```python
import torch

def _softmax(x, axis=-1):
    return torch.softmax(x, dim=axis)
def _gelu(x):
    return torch.nn.functional.gelu(x, approximate="tanh")
def _silu(x):
    return torch.nn.functional.silu(x)
def _sigmoid(x):
    return torch.sigmoid(x)
def _layernorm(x, axis=-1, eps=1e-5):
    m = x.mean(dim=axis, keepdim=True)
    v = x.var(dim=axis, keepdim=True, unbiased=False)
    return (x - m) / torch.sqrt(v + eps)
def _scatter_add(tgt, idx, src, axis=0):
    return tgt.clone().index_add_(axis, idx, src)
def _segment_sum(src, seg, n):
    out = torch.zeros((n,) + src.shape[1:], dtype=src.dtype)
    return out.index_add_(0, seg, src)
def _pad(x, pw):
    flat = tuple(v for pair in reversed(pw) for v in pair)
    return torch.nn.functional.pad(x, flat)

kernel_name = 'standalone__mha_softmax__near_ridge'

def setup_inputs():

    _w = (lambda a: (lambda t: t.to(torch.bfloat16) if t.is_floating_point() else t)(torch.as_tensor(a)))
    B, H, Sq, Sk, D = 8, 32, 192, 512, 128
    return {
        "q": _w((lambda *s: torch.randn(*s, dtype=torch.bfloat16) * 0.8)(B, H, Sq, D)),
        "k": _w((lambda *s: torch.randn(*s, dtype=torch.bfloat16) * 0.8)(B, H, Sk, D)),
        "v": _w((lambda *s: torch.randn(*s, dtype=torch.bfloat16) * 0.05)(B, H, Sk, D)),
    }

def reference(q, k, v):
    scale = q.shape[-1] ** -0.5
    scores = torch.einsum("bhqd,bhkd->bhqk", q, k) * scale
    p = _softmax(scores, axis=-1)
    return torch.einsum("bhqk,bhkd->bhqd", p, v)
```

```python
import re

def regs(spec):
    m = re.fullmatch(r'([vas])\[(\d+):(\d+)\]', spec)
    if m:
        return [(m.group(1), i) for i in range(int(m.group(2)), int(m.group(3)) + 1)]
    m = re.fullmatch(r'([vas])(\d+)', spec)
    if m:
        return [(m.group(1), int(m.group(2)))]
    if spec in ('vcc',):
        return [('s', 'vcc')]
    if spec == 'm0':
        return [('s', 'm0')]
    if spec == 'exec':
        return [('s', 'exec')]
    return []

def R(kind, lo, n=1):
    return f"{kind}{lo}" if n == 1 else f"{kind}[{lo}:{lo+n-1}]"

TRANS = ('v_exp_f32', 'v_log_f32', 'v_rcp_f32', 'v_rsq_f32', 'v_sqrt_f32')

class Ins:
    def __init__(self, text):
        self.text = text
        t = text.strip()
        self.op = t.split()[0]
        rest = t[len(self.op):].strip()
        ops = []
        cur = ''; depth = 0
        for ch in rest:
            if ch == '[': depth += 1
            if ch == ']': depth -= 1
            if ch == ',' and depth == 0:
                ops.append(cur.strip()); cur = ''
            else:
                cur += ch
        if cur.strip(): ops.append(cur.strip())
        clean = []
        for o in ops:
            o0 = o.split()[0] if o.split() else o
            o0 = o0.lstrip('-')
            if o0.startswith('abs(') : o0 = o0[4:-1]
            if o0.startswith('|'): o0 = o0.strip('|')
            clean.append(o0)
        self.ops = clean
        op = self.op
        self.kind = 'other'
        self.w = []; self.r = []; self.srcc = []; self.ab = []
        self.passes = 0
        if op.startswith('v_smfmac'):
            self.kind = 'mfma'; self.passes = 8
            self.w = regs(clean[0]); self.ab = regs(clean[1]) + regs(clean[2]) + regs(clean[3]); self.srcc = regs(clean[0])
            self.r = self.ab + self.srcc
        elif op.startswith('v_mfma'):
            self.kind = 'mfma'
            self.passes = 4 if '16x16x32' in op else 8
            self.w = regs(clean[0]); self.ab = regs(clean[1]) + regs(clean[2]); self.srcc = regs(clean[3])
            self.r = self.ab + self.srcc
        elif op.startswith('v_permlane'):
            self.kind = 'valu'; self.perm = True
            self.w = regs(clean[0]) + regs(clean[1]); self.r = list(self.w)
        elif op.startswith('v_cmp'):
            self.kind = 'valu'
            self.w = regs(clean[0]); self.r = sum((regs(x) for x in clean[1:]), [])
        elif op.startswith('v_readfirstlane') or op.startswith('v_readlane'):
            self.kind = 'valu'
            self.w = regs(clean[0]); self.r = sum((regs(x) for x in clean[1:]), [])
        elif op.startswith('v_'):
            self.kind = 'valu'
            self.w = regs(clean[0]); self.r = sum((regs(x) for x in clean[1:]), [])
            if op.startswith('v_fmac') or 'dpp' in text or 'row_' in text:
                self.r += self.w
            if op.startswith('v_cndmask') and len(clean) == 3: self.r += regs('vcc')
        elif op.startswith('ds_read'):
            self.kind = 'ds'
            self.w = regs(clean[0]); self.r = regs(clean[1])
        elif op.startswith('ds_write'):
            self.kind = 'ds'
            self.r = sum((regs(x) for x in clean), [])
        elif op.startswith('buffer_load'):
            self.kind = 'vmem'
            if re.search(r'\blds\b', text):
                self.r = sum((regs(x) for x in clean), []) + regs('m0'); self.ldsdma = True
            else:
                self.w = regs(clean[0]); self.r = sum((regs(x) for x in clean[1:]), [])
        elif op.startswith('buffer_store'):
            self.kind = 'vmem'; self.store = True
            self.r = sum((regs(x) for x in clean), []); self.data = regs(clean[0])
        elif op.startswith('global_load'):
            self.kind = 'vmem'
            self.w = regs(clean[0]); self.r = sum((regs(x) for x in clean[1:]), [])
        elif op.startswith('s_'):
            self.kind = 'salu'
            if op in ('s_nop', 's_waitcnt', 's_barrier', 's_branch', 's_endpgm', 's_setprio', 's_sleep') or op.startswith('s_cbranch'):
                pass
            elif op.startswith('s_cmp'):
                self.r = sum((regs(x) for x in clean), [])
            else:
                self.w = regs(clean[0]); self.r = sum((regs(x) for x in clean[1:]), [])
                if 'saveexec' in op: self.w += regs('exec')
        self.trans = any(op.startswith(x) for x in TRANS)
        self.states = 1
        if op == 's_nop': self.states = int(clean[0]) + 1

def need(prod, cons):
    n = 0
    pw = set(prod.w); cr = set(cons.r); cw = set(cons.w)
    if prod.kind == 'mfma':
        big = {4: 8, 8: 12}[prod.passes]
        if cons.kind == 'mfma':
            if pw & set(cons.ab): n = max(n, big)
            if pw & set(cons.srcc):
                if not (cons.srcc == prod.w and cons.passes == prod.passes):
                    n = max(n, {4: 6, 8: 10}[prod.passes])
            if pw & cw and not (cons.srcc == prod.w):
                n = max(n, {4: 6, 8: 10}[prod.passes])
        elif cons.kind in ('valu', 'ds', 'vmem'):
            if pw & (cr | cw): n = max(n, big)
        if cons.kind == 'valu' and set(prod.srcc) & cw:
            n = max(n, {4: 3, 8: 7}[prod.passes])
    if prod.kind == 'valu':
        vw = {x for x in pw if x[0] in 'va'}
        sw = {x for x in pw if x[0] == 's'}
        if cons.kind == 'mfma' and vw & cr: n = max(n, 2)
        if cons.kind == 'valu':
            if getattr(cons, 'perm', False) and vw & cr: n = max(n, 2)
            if ('dpp' in cons.text or 'row_' in cons.text or 'quad_perm' in cons.text) and vw & cr: n = max(n, 2)
            if cons.op.startswith('v_readfirstlane') or cons.op.startswith('v_readlane'):
                if vw & cr: n = max(n, 1)
            if prod.trans and not cons.trans and vw & cr: n = max(n, 1)
            if prod.trans and cons.trans and vw & cr: n = max(n, 1)
            if sw & cr: n = max(n, 2)
        if cons.kind == 'vmem' and sw & cr: n = max(n, 5)
        if cons.kind == 'salu' and sw & cr: n = max(n, 1)
        if cons.kind == 'salu' and cons.op.startswith('s_cbranch_vcc') and ('s', 'vcc') in sw: n = max(n, 1)
    if prod.kind == 'salu':
        if ('s', 'm0') in pw and getattr(cons, 'ldsdma', False): n = max(n, 1)
    if getattr(prod, 'store', False) and len(prod.data) >= 3:
        if set(prod.data) & cw: n = max(n, 2)
    return n

class Emit:
    def __init__(self):
        self.lines = []
        self.hist = []
        self.nops = 0
    def raw(self, text):
        self.lines.append(text)
    def label(self, name):
        self.lines.append(name + ":")
    def comment(self, c):
        self.lines.append("    ; " + c)
    def __call__(self, text):
        for t in text.split("\n"):
            t = t.strip()
            if not t: continue
            ins = Ins(t)
            req = 0; dist = 0
            for p in reversed(self.hist[-24:]):
                k = need(p, ins) - dist
                if k > req: req = k
                dist += p.states
                if dist >= 20: break
            while req > 0:
                k = min(req, 16)
                nop = Ins(f"s_nop {k-1}")
                self.lines.append(f"    s_nop {k-1}")
                self.hist.append(nop); self.nops += 1
                req -= k
            self.lines.append("    " + t)
            self.hist.append(ins)
    def peek(self, text):
        ins = Ins(text); req = 0; dist = 0
        for p in reversed(self.hist[-24:]):
            k = need(p, ins) - dist
            if k > req: req = k
            dist += p.states
            if dist >= 20: break
        return req
    def fence(self, n=12):
        self(f"s_nop {n-1}")
    def text(self):
        return "\n".join(self.lines)

def check_seq(lines):
    hist = []; bad = []
    for t in lines:
        t = t.split(';')[0].strip()
        if not t or t.endswith(':'): continue
        ins = Ins(t); dist = 0
        for p in reversed(hist[-24:]):
            if need(p, ins) > dist: bad.append((p.text, t, need(p, ins), dist))
            dist += p.states
            if dist >= 20: break
        hist.append(ins)
    return bad
```

```python
import sys
from asmlib import *
from sched import *
from slowpath import slow_path

KNAME = "standalone__mha_softmax__near_ridge_kernel"
HDR = open('standalone__mha_softmax__near_ridge.s.ref').read().split('; Override launch')[0]
MF = "v_mfma_f32_16x16x32_bf16"
SMF = "v_smfmac_f32_16x16x64_bf16"

def gen(ldpol="nt", stpol="nt", A=14, SYNC=13, SYNC1=10, SYNCH=(11, 26), hord=(0, 0), rot=True, prof=False, codepf=1,
        verbose=False, thi=0x4b800000, tlo=0x33800000, Am=None, pace=None, vsp=6, cap=99, nopfill=True, lag=(20, 86, 0),
        h0step=1, nocomp=False, touch=0, dropl=(), l7at=(13, 16), l6at=(1, 1, 1), pad=None, pstamps=False, smf=True):
    e = Emit(); sc = Sched(e)
    O = lambda qb, T: (qb * 8 + T) * 4
    L = lambda qb: 96 + qb * 4
    S = lambda kb, qb: 108 + (kb * 3 + qb) * 4
    P = lambda t, ks, qb: 156 + (t % 3) * 24 + (qb * 2 + ks) * 4
    VB = lambda T: 228 + T
    VHD, IDX = 232, 233
    RL = lambda qb: L(qb) + 2
    KA = lambda s: 234 + s
    VA = lambda T: 238 + T
    VKD, VVD = 246, 247
    OW = lambda i: 248 + i
    OR_, VST = 252, 253
    TMP = 40
    AQ = lambda qb, s: (qb * 4 + s) * 4
    AK = lambda kb, s: 48 + (kb * 4 + s) * 4
    AV = lambda buf, ks, T: 112 + buf * 64 + (T * 2 + ks) * 4
    AH = lambda h, T, tt, ks: 112 + h * 64 + ((T * 2 + tt) * 2 + ks) * 4
    AONE, ASP = 240, 244
    sQ, sK, sV, sO = 12, 16, 20, 24
    sQB = 56; sTO = 72
    sQO, sKV, sW4, sOFF, sV6, sW, sTMP, sC, sROT = 28, 29, 30, 31, 32, 34, 35, 36, 38
    KS = lambda t: (t % 4) * 16384
    VS = lambda t: 65536 + (t % 4) * 16384
    QS = lambda qb: 65536 + (qb + 1) * 16384
    tiles = [('K', 0), ('Q', 0), ('Q', 1), ('Q', 2)]
    tiles += [('K', 1)]
    for t in range(2, 8): tiles += [('K', t), ('V', t - 2)]
    tiles += [('H', 0), ('H', 1)]
    QV = lambda j: 16 + j
    QA = lambda s: 20 + s
    nstamp = [0]
    def stamp():
        i = nstamp[0]; nstamp[0] += 1
        a = 60 + 4 * (i % 2); b = 60 + 4 * ((i + 1) % 2)
        t = f"s_memrealtime s[{a}:{a+1}]\ns_memtime s[{a+2}:{a+3}]"
        if i > 0: t += f"\nv_writelane_b32 v254, s{b}, {i-1}\nv_writelane_b32 v255, s{b+2}, {i-1}"
        return t

    e("s_cmp_ge_u32 s2, 256")
    e("s_cbranch_scc1 L_end")
    e(f"s_load_dwordx2 s[{sK}:{sK+1}], s[0:1], 8")
    e(f"s_load_dwordx2 s[{sQ}:{sQ+1}], s[0:1], 0")
    e(f"s_load_dwordx2 s[{sV}:{sV+1}], s[0:1], 16")
    e(f"s_load_dwordx2 s[{sO}:{sO+1}], s[0:1], 24")
    if prof:
        e("s_load_dwordx2 s[40:41], s[0:1], 40")
        e("s_memrealtime s[50:51]")
    g, n, w, t1, t2 = TMP, TMP + 1, TMP + 2, TMP + 3, TMP + 4
    e(f"v_lshrrev_b32 v{w}, 6, v0")
    e(f"v_bfe_u32 v{g}, v0, 4, 2")
    e(f"v_readfirstlane_b32 s{sW}, v{w}")
    e(f"v_and_b32 v{n}, 15, v0")
    e(f"v_xor_b32 v{t1}, v{g}, v{n}")
    e(f"v_lshlrev_b32 v{t1}, 4, v{t1}")
    e(f"v_lshl_add_u32 v{QV(0)}, v{g}, 8, v{t1}")
    e(f"v_lshlrev_b32 v{t2}, 6, v{w}")
    e(f"v_xor_b32 v{VKD}, v{QV(0)}, v{t2}")
    e("s_and_b32 s3, s2, 7")
    e("s_lshl_b32 s3, s3, 5")
    e("s_lshr_b32 s2, s2, 3")
    e("s_add_u32 s3, s2, s3")
    e(f"s_lshl_b32 s{sW4}, s{sW}, 12")
    e(f"s_lshl_b32 s{sKV}, s3, 17")
    e(f"s_add_u32 s{sKV}, s{sKV}, s{sW4}")
    if rot:
        e(f"s_lshl_b32 s{sROT}, s3, 11")
        e(f"s_and_b32 s{sROT}, s{sROT}, 0x1c000")
    for d, sz in ((sK, 33554432), (sQ, 12582912)):
        e(f"s_mov_b32 s{d+2}, {sz}")
        e(f"s_mov_b32 s{d+3}, 0x20000")
    e(f"s_mul_i32 s{sQO}, s3, 49152")
    e(f"s_mul_i32 s{sTMP}, s{sW}, 12288")
    e(f"s_add_u32 s{sQO}, s{sQO}, s{sTMP}")
    for j in range(1, 4):
        e(f"v_xor_b32 v{QV(j)}, {j << 6}, v{QV(0)}")

    def kvoff(dst, t):
        if rot:
            return [f"s_add_u32 s{dst}, s{sROT}, {t * 16384}", f"s_and_b32 s{dst}, s{dst}, 0x1ffff", f"s_add_u32 s{dst}, s{dst}, s{sKV}"]
        return [f"s_add_u32 s{dst}, s{sKV}, {t * 16384}"]
    def piece_setup(p):
        i, j = divmod(p, 4)
        kind, t = tiles[i]
        if kind == 'H':
            return [f"s_add_u32 m0, s{sW4}, {VS(6 + t) + (j >> 1) * 2048 - t * 128 - (j & 1) * 1024}"]
        if j: return []
        base = dict(K=KS, V=VS, Q=QS)[kind](t)
        out = [f"s_add_u32 m0, s{sW4}, {base}"]
        if kind == 'Q': out.append(f"s_add_u32 s{sOFF}, s{sQO}, {t * 4096}")
        elif p == 0: out += kvoff(sTO, 0)
        return out
    def piece_text(p):
        i, j = divmod(p, 4)
        kind, t = tiles[i]
        pol = ldpol(i, j, kind) if callable(ldpol) else ldpol
        if kind == 'H':
            return f"buffer_load_dwordx4 v{VHD}, s[{sV}:{sV+3}], s{sTO + 6 + (j >> 1)} offen offset:{(j & 1) * 2048 + t * 128} {pol} lds"
        srd = dict(K=sK, V=sV, Q=sQ)[kind]
        vo = dict(K=VKD, V=VVD, Q=QV(j))[kind]
        so = sOFF if kind == 'Q' else sTO + t
        return f"buffer_load_dwordx4 v{vo}, s[{srd}:{srd+3}], s{so} offen offset:{j*1024} {pol} lds"
    npieces = 4 * len(tiles)
    nextp = [0]
    def issue_now(upto):
        while nextp[0] < min(upto, npieces, cap):
            p = nextp[0]; nextp[0] += 1
            if p > 0:
                for t in piece_setup(p): e(t)
            sc.emit(F(piece_text(p), 'dma', tag=p // 4))
    for t in piece_setup(0): e(t)
    e("s_waitcnt lgkmcnt(0)")
    if pstamps: e(stamp())
    issue_now(12)
    if pstamps: e("s_waitcnt lgkmcnt(0)"); e(stamp())
    if codepf == 1:
        e("s_getpc_b64 s[4:5]")
        e.label("L_pc")
        e(f"s_lshl_b32 s6, s2, 2")
        e(f"s_add_u32 s6, s6, s{sW}")
        e(f"s_lshl_b32 s6, s6, 6")
        e("s_load_dword s7, s[4:5], s6")
        for k in range(2):
            e("s_add_u32 s6, s6, 0x2000")
            if k == 1: e("s_min_u32 s6, s6, L_codeend-L_pc-4")
            e(f"s_load_dword s{8+k}, s[4:5], s6")
    for d, sz in ((sV, 33554432), (sO, 12582912)):
        e(f"s_mov_b32 s{d+2}, {sz}")
        e(f"s_mov_b32 s{d+3}, 0x20000")
    for tt in range(1, 8):
        for t in kvoff(sTO + tt, tt): e(t)
    for qb in range(3):
        e(f"s_add_u32 s{sQB + qb}, s{sQO}, {qb * 4096}")
    if touch:
        e(f"s_lshl_b32 s10, s{sW}, 15")
        e(f"s_lshl_b32 s11, s3, 17")
        e(f"s_add_u32 s10, s10, s11")
        e(f"s_load_dword s11, s[{sV}:{sV+1}], s10")
        if touch > 1: e(f"s_load_dword s10, s[{sO}:{sO+1}], s{sQO}")
    w1 = TMP + 5
    e(f"v_and_b32 v{w1}, 1, v{w}")
    e(f"v_lshl_add_u32 v{t2}, v{w1}, 2, v{g}")
    e(f"v_lshlrev_b32 v{t2}, 1, v{t2}")
    e(f"v_xor_b32 v{t2}, v{t2}, v{n}")
    e(f"v_lshlrev_b32 v{t2}, 4, v{t2}")
    e(f"v_lshl_add_u32 v{VVD}, v{g}, 8, v{t2}")
    e(f"v_lshl_add_u32 v{QA(0)}, v{n}, 8, v{t1}")
    e(f"v_lshl_add_u32 v{QA(0)}, v{w}, 12, v{QA(0)}")
    e(f"v_add_u32 v{QA(0)}, 0x10000, v{QA(0)}")
    for s in range(1, 4):
        e(f"v_xor_b32 v{QA(s)}, {s*64}, v{QA(0)}")
    r_, c_ = TMP + 6, TMP + 7
    e(f"v_lshrrev_b32 v{r_}, 2, v{n}")
    e(f"v_and_b32 v{c_}, 3, v{n}")
    e(f"v_lshl_add_u32 v{t2}, v{r_}, 4, v{c_}")
    e(f"v_lshl_add_u32 v{KA(0)}, v{t2}, 8, v{t1}")
    for s in range(1, 4):
        e(f"v_xor_b32 v{KA(s)}, {s*64}, v{KA(0)}")
    g1 = TMP + 8
    e(f"v_and_b32 v{g1}, 1, v{g}")
    e(f"v_lshl_add_u32 v{t2}, v{g}, 4, v{r_}")
    e(f"v_lshlrev_b32 v{t2}, 8, v{t2}")
    e(f"v_lshl_add_u32 v{VA(0)}, v{g1}, 2, v{r_}")
    e(f"v_lshl_add_u32 v{t2}, v{VA(0)}, 5, v{t2}")
    e(f"v_lshl_add_u32 v{VA(0)}, v{c_}, 3, v{t2}")
    e(f"v_add_u32 v{VA(0)}, 0x10000, v{VA(0)}")
    for T in range(1, 8):
        e(f"v_xor_b32 v{VA(T)}, {T*32}, v{VA(0)}")
    e(f"v_lshrrev_b32 v{t2}, 1, v{r_}")
    e(f"v_lshl_add_u32 v{t2}, v{g1}, 1, v{t2}")
    e(f"v_lshlrev_b32 v{t2}, 5, v{t2}")
    e(f"v_lshl_add_u32 v{t2}, v{c_}, 3, v{t2}")
    e(f"v_lshl_add_u32 v{t2}, v{r_}, 7, v{t2}")
    e(f"v_lshl_add_u32 v{t2}, v{g}, 12, v{t2}")
    e(f"v_add_u32 v{VB(0)}, 0x10000, v{t2}")
    for T in range(1, 4):
        e(f"v_xor_b32 v{VB(T)}, {T*32}, v{VB(0)}")
    e(f"v_lshrrev_b32 v{t1}, 1, v{g}")
    e(f"v_and_b32 v{t2}, 7, v{n}")
    e(f"v_xor_b32 v{t1}, v{t1}, v{t2}")
    e(f"v_lshlrev_b32 v{t1}, 4, v{t1}")
    e(f"v_lshl_add_u32 v{t1}, v{n}, 7, v{t1}")
    e(f"v_lshl_add_u32 v{t1}, v{g1}, 3, v{t1}")
    e(f"v_lshl_add_u32 v{OW(0)}, v{w}, 14, v{t1}")
    for i in range(1, 4):
        e(f"v_xor_b32 v{OW(i)}, {i*32}, v{OW(0)}")
    e(f"v_bfe_u32 v{t1}, v0, 3, 3")
    e(f"v_and_b32 v{t2}, 7, v0")
    e(f"v_lshlrev_b32 v{VST}, 4, v{t2}")
    e(f"v_lshl_add_u32 v{VST}, v{t1}, 8, v{VST}")
    e(f"v_xor_b32 v{t2}, v{t2}, v{t1}")
    e(f"v_lshlrev_b32 v{t2}, 4, v{t2}")
    e(f"v_lshl_add_u32 v{t2}, v{t1}, 7, v{t2}")
    e(f"v_lshl_add_u32 v{OR_}, v{w}, 14, v{t2}")
    e(f"v_lshl_add_u32 v{t2}, v{w1}, 1, v{g1}")
    e(f"v_lshlrev_b32 v{t2}, 5, v{t2}")
    e(f"v_xor_b32 v{VHD}, v{VST}, v{t2}")
    e(f"v_mov_b32 v{t1}, 0x3f803f80")
    for i in range(4):
        e(f"v_accvgpr_write_b32 a{AONE+i}, v{t1}")
    if smf:
        e(f"v_cmp_gt_u32 vcc, 2, v{c_}")
        e(f"v_cndmask_b32 v{t1}, 0, v{t1}, vcc")
        e(f"v_and_b32 v{t2}, 1, v0")
        e(f"v_mul_u32_u24 v{t2}, 0xaaaa, v{t2}")
        e(f"v_or_b32 v{t2}, 0x4444, v{t2}")
        e(f"v_lshl_or_b32 v{IDX}, v{t2}, 16, v{t2}")
        for i in range(4):
            e(f"v_accvgpr_write_b32 a{ASP+i}, v{t1}")
    for i in range(12):
        e(f"v_mov_b32 v{L(0)+i}, 0")
    e(f"s_mov_b32 s{sC}, 0x3e0293ee")
    e(f"s_mov_b32 s{sC+1}, 0x3e0293ee")
    issue_now(A)
    if pstamps: e(stamp())
    e(sc.vmwait_text(0))
    if pstamps: e("s_waitcnt lgkmcnt(0)"); e(stamp())
    e("s_barrier")
    e("s_waitcnt lgkmcnt(0)")
    for kb in range(4):
        for s in range(4):
            sc.emit(F(f"ds_read_b128 {R('a', AK(kb, s), 4)}, v{KA(s)} offset:{KS(0) + kb*1024}", 'ds'))

    slots = []; fill = []; marks = {}
    def smf_slot(t, kb, qb, s):
        c = "0" if s == 0 else R('v', S(kb, qb), 4)
        slots.append(dict(text=f"{MF} {R('v', S(kb, qb), 4)}, {R('a', AK(kb, s), 4)}, {R('a', AQ(qb, s), 4)}, {c}", sid=(t, kb, qb, s)))
    def l_slot(t, qb):
        if smf:
            slots.append(dict(text=f"{SMF} {R('v', L(qb), 4)}, {R('a', ASP, 4)}, {R('v', P(t, 0, qb), 8)}, v{IDX}", lid=(t, qb), cap=4))
        else:
            for ks in range(2):
                slots.append(dict(text=f"{MF} {R('v', L(qb), 4)}, {R('a', AONE, 4)}, {R('v', P(t, ks, qb), 4)}, {R('v', L(qb), 4)}", **({'lid': (t, qb)} if ks == 0 else {})))
    zat = {}
    for t in range(8):
        marks[('K', t)] = len(slots)
        order = [(kb, qb) for qb in range(3) for kb in range(4)] if t == 0 else [(kb, qb) for kb in range(4) for qb in range(3)]
        ncut = (48 - SYNC + 2) // 4
        for c, (kb, qb) in enumerate(order):
            if t >= 2 and c == ncut:
                if t == 2: l_slot(0, 0)
                zat[('V', t - 2)] = len(slots)
                l_slot(t - 2, 1); l_slot(t - 2, 2)
            if t == 7:
                for q2 in range(3):
                    if l6at[q2] == c: l_slot(6, q2)
            for s in range(4): smf_slot(t, kb, qb, s)
        if t < 2: continue
        u = t - 2
        marks[('V', u)] = len(slots)
        ncut = (48 - SYNC + 1) // 2
        for T in range(8):
            for qb in range(3):
                if u < 5 and T * 3 + qb == ncut:
                    zat[('K', t + 1)] = len(slots)
                    l_slot(u + 1, 0)
                if u == 5:
                    if T * 3 + qb in l7at: l_slot(7, l7at.index(T * 3 + qb))
                    if T * 3 + qb == (48 - SYNCH[0] + 1) // 2:
                        zat[('H', 0)] = len(slots)
                        l_slot(7, 2)
                for ks in range(2):
                    c = "0" if (u == 0 and ks == 0) else R('v', O(qb, T), 4)
                    slots.append(dict(text=f"{MF} {R('v', O(qb, T), 4)}, {R('a', AV(u%2, ks, T), 4)}, {R('v', P(u, ks, qb), 4)}, {c}",
                                      pid=(u, T, qb, ks)))
    HORD = [[(T, qb) for qb in range(3) for T in range(4)],
            [(T, qb) for T in range(4) for qb in range(2)] + [(T, 2) for T in range(4)],
            [(T, qb) for T in range(4) for qb in range(3)]]
    for h in range(2):
        marks[('H', h)] = len(slots)
        for T, qb in HORD[hord[h]]:
            for tt in range(2):
                for ks in range(2):
                    o = R('v', O(qb, 4*h + T), 4)
                    slots.append(dict(text=f"{MF} {o}, {R('a', AH(h, T, tt, ks), 4)}, {R('v', P(6 + tt, ks, qb), 4)}, {o}", hid=(h, qb, T, tt, ks)))
    sidx = {sl['sid']: k for k, sl in enumerate(slots) if 'sid' in sl}
    pidx = {sl['pid']: k for k, sl in enumerate(slots) if 'pid' in sl}
    lidx = {sl['lid']: k for k, sl in enumerate(slots) if 'lid' in sl}
    hidx = {sl['hid']: k for k, sl in enumerate(slots) if 'hid' in sl}
    lend = lambda t, qb: lidx[(t, qb)] + (0 if smf else 1)
    soft = {}
    for t in range(8):
        for kb in range(4):
            for qb in range(3):
                end = sidx[(t, kb, qb, 3)]
                dl = lidx[(t, qb)] - 2
                if t < 7: dl = min(dl, sidx[(t + 1, kb, qb, 0)] - 1)
                if t >= 2 and lag is not None:
                    dl = min(dl, marks[('K', t)] + lag[0] + max(0, lag[2] * (6 - t)) + ((kb * 3 + qb) * lag[1]) // 11)
                if t == 7: dl = min(dl, lidx[(7, qb)] - 2 - 16 * (3 - kb))
                b = S(kb, qb); p = P(t, kb // 2, qb) + (kb % 2) * 2
                er = end + 1
                ex = [F(f"v_exp_f32 v{b+r}, v{b+r}", 'exp', earliest=er, deadline=dl - 4 + r) for r in range(4)]
                cv = [F(f"v_cvt_pk_bf16_f32 v{p+x}, v{b+2*x}, v{b+2*x+1}", 'valu', earliest=er, deadline=dl, after=ex[2*x:2*x+2]) for x in range(2)]
                fill += ex + cv; soft[(t, kb, qb)] = ex + cv
                slots[lidx[(t, qb)]].setdefault('deps', []).extend(cv)
                if t < 7: slots[sidx[(t + 1, kb, qb, 0)]].setdefault('deps', []).extend(cv)
    def qstage(qb):
        def pre(pend):
            i = 1 + qb
            issue_now(4 * i + A)
            e(sc.vmwait_text(i))
            if prof: e(stamp())
            rd = []
            for s in range(4):
                f = F(f"ds_read_b128 {R('v', 4*s, 4)}, v{QA(s)} offset:{QS(qb) - 65536}", 'ds'); sc.emit(f); rd.append(f)
            issue_now(4 * i + A + 1)
            if qb:
                sc.drain([f for kb in range(4) for f in soft[(0, kb, qb - 1)] if not f.done])
            for s in range(4):
                sc.lgkm(rd[s])
                for j in range(4):
                    x = 4 * s + j; tt = 24 + 2 * j
                    e(f"v_lshlrev_b32 v{tt}, 16, v{x}")
                    e(f"v_and_b32 v{tt+1}, 0xffff0000, v{x}")
                for j in range(4):
                    tt = 24 + 2 * j
                    e(f"v_pk_mul_f32 v[{tt}:{tt+1}], v[{tt}:{tt+1}], s[{sC}:{sC+1}]")
                for j in range(4):
                    tt = 24 + 2 * j
                    e(f"v_cvt_pk_bf16_f32 v{tt}, v{tt}, v{tt+1}")
                for j in range(4):
                    tt = 24 + 2 * j
                    e(f"v_accvgpr_write_b32 a{AQ(qb, s)+j}, v{tt}")
                if s == 1: issue_now(4 * i + A + 2)
        return pre
    for qb in range(3):
        slots[16 * qb]['pre'] = qstage(qb)
        slots[16 * qb + 1]['pre'] = (lambda pend, qb=qb: issue_now(4 * (1 + qb) + A + 3))
    slots[48 - SYNC1 - 1]['pre'] = lambda pend: issue_now(16 + A)
    p_first = min(16 + A, cap)
    zat[('K', 1)] = 48 - SYNC1; zat[('K', 2)] = 96 - SYNC
    H0, H1 = marks[('H', 0)], marks[('H', 1)]
    zat[('H', 1)] = H1 - SYNCH[1]
    syncs = [(i, zat[tiles[i]]) for i in range(4, len(tiles))]
    rdplan = []
    for i, k0 in syncs:
        kind, t = tiles[i]
        if kind == 'K':
            for j in range(8):
                kb, sh = divmod(j, 2)
                at = k0 + ([2, 4, 8, 14, 20, 26, 32, 38] if t == 1 else [2, 5, 11, 17, 23, 29, 35, 41])[j]
                assert at > sidx[(t - 1, kb, 2, 3)]
                rdplan.append((i, at, [f"ds_read_b128 {R('a', AK(kb, s), 4)}, v{KA(s)} offset:{KS(t) + kb*1024}" for s in (2*sh, 2*sh+1)],
                               sidx[(t, kb, 0, 0)] if (sh and j > 1) else sidx[(t, kb, 0, 2 * sh)] if j < 2 else None))
        elif kind == 'V':
            for j in range(16):
                T, ks = divmod(j, 2)
                rdplan.append((i, k0 + 2 + 3 * j, [f"ds_read_b64_tr_b16 {R('a', AV(t%2, ks, T) + 2*hh, 2)}, v{VA(T)} offset:{VS(t) - 65536 + (8*ks + 4*hh)*256}" for hh in range(2)],
                               pidx[(t, T, 0, 0)] if ks else None))
        else:
            if t == 0: ats = [k0 + 1 + h0step * j for j in range(16)]
            else:
                lastk = hidx[(1, 0, 3, 1, 1)] - 7
                c1 = [k for k in range(k0 + 1, lastk + 1) if (k - H0) % 2 == 1]
                c2 = [k for k in c1 if (k - H0) % 4 == 1]
                ats = sorted(c1 + c2[:max(0, 16 - len(c1))])[:16]
                assert len(ats) == 16
            for j in range(16):
                T, tt, ks = j >> 2, (j >> 1) & 1, j & 1
                rdplan.append((i, ats[j], [f"ds_read_b64_tr_b16 {R('a', AH(t, T, tt, ks) + 2*hh, 2)}, v{VB(T)} offset:{VS(6 + t) - 65536 + tt*2048 + (8*ks + 4*hh)*128}" for hh in range(2)],
                               hidx[(t, 0, T, tt, 0)] if ks else None))
    zz = {k0 + d for _, k0 in syncs[:-1] for d in (-1, 0, 1)}
    for n_, (i, at, txs, use) in enumerate(rdplan):
        while use is not None and use - 1 in zz: use -= 1
        assert use is None or use - at >= 6, (tiles[i], at, use)
        rdplan[n_] = (i, at, txs, use)
    rdgaps = {at for _, at, _, _ in rdplan}
    waitgaps = {u - 1 for _, _, _, u in rdplan if u is not None} | {k0 - 1 for _, k0 in syncs} | {k0 for _, k0 in syncs}
    ggaps = sorted(({k0 + 1 for _, k0 in syncs} | {k + 1 for k in rdgaps}) - rdgaps - waitgaps)
    allpos = {}
    if pace is None:
        np_ = p_first
        for n_, (i, k0) in enumerate(syncs):
            k1 = syncs[n_ + 1][1] if n_ + 1 < len(syncs) else k0 + 48
            Ai = A if Am is None else (Am[n_] if isinstance(Am, (list, tuple)) else Am)
            ps = list(range(np_, max(np_, min(npieces, 4 * i + 4 + Ai)))); np_ += len(ps)
            for j, p in enumerate(ps):
                allpos[p] = k0 + 1 + ((j if len(ps) > 4 else p - (4 * i + Ai)) * (k1 - k0)) // max(4, len(ps))
    else:
        for p in range(p_first, npieces):
            ti, j = divmod(p, 4)
            kind, t = tiles[ti]
            kt = t if kind == 'K' else t + 2 if kind == 'V' else 7
            y = pace[kt] if isinstance(pace, (list, tuple)) else pace
            base = zat[('K', max(kt - 1, 1))]
            vs = vsp if y > 30 else 12
            allpos[p] = base + y - 12 * (3 - j) if kind == 'K' else base + y + vs * (j + 1 + (4 * (t + 1) if kind == 'H' else 0))
    last = syncs[0][1] - 2
    for p in range(p_first, npieces):
        last = allpos[p] = min(k for k in ggaps if k >= max(allpos[p], last + 3))
    barf = {}; dma_f = []; prev = None; np_ = p_first
    for n_, (i, k0) in enumerate(syncs):
        k1 = syncs[n_ + 1][1] if n_ + 1 < len(syncs) else 10**9
        wt = F((lambda i=i: sc.vmwait_text(i)), 'salu', earliest=k0 - 1, deadline=k0 - 1, after=[x for x in dma_f if x.tag <= i])
        br = F("s_barrier", 'salu', earliest=k0, deadline=k0, after=[wt])
        fill += [wt, br]; barf[i] = br
        if i < len(tiles) - 1: slots[k0]['only'] = True
        if prof:
            fill.append(F(stamp, 'salu', earliest=k0, deadline=k0, after=[br], tag='stamp'))
        while np_ < npieces and allpos[np_] < k1:
            p = np_; np_ += 1
            at = allpos[p]
            aft = [prev] if prev else []
            for tx in piece_setup(p):
                sf = F(tx, 'salu', earliest=at - 8, deadline=at - 1, after=aft); fill.append(sf); aft = [sf]
            df = F(piece_text(p), 'dma', earliest=at, deadline=at, after=aft + [br], tag=p // 4)
            slots[at]['only'] = True
            fill.append(df); dma_f.append(df); prev = df
    if pad:
        for n_, cyc in enumerate(pad):
            k0 = syncs[n_][1]
            for x in range(8):
                c = cyc // 8 // 4
                if c: slots[k0 + 3 + 5 * x]['pre'] = (lambda pend, c=c: [e(f"s_nop {min(c - 16 * y, 16) - 1}") for y in range((c + 15) // 16)])
    prevrd = None
    for i, at, txs, use in rdplan:
        for tx in txs:
            f = F(tx, 'ds', earliest=at, deadline=at, after=[barf[i]] + ([prevrd] if prevrd else []))
            fill.append(f); prevrd = f
        if use is not None: slots[use]['needs'] = f
    rc = []
    for qb in range(3):
        k = lend(7, qb)
        a = [F(f"v_add_f32 v{L(qb)}, v{L(qb)}, v{L(qb)+1}", 'valu', earliest=k + 1, deadline=hidx[(0, qb, 0, 0, 0)] + 1)]; fill += a
        f = F(f"v_rcp_f32 v{RL(qb)}, v{L(qb)}", 'exp', earliest=k + 1, deadline=hidx[(0, qb, 0, 0, 0)] + 2, after=a); fill.append(f); rc.append(f)
    k = zat[('H', 1)]
    X = KA(0)
    c1 = F(f"v_max3_f32 v{X}, v{L(0)}, v{L(1)}, v{L(2)}", 'valu', earliest=lend(7, 2), deadline=k, after=rc)
    c2 = F(f"v_min3_f32 v{X+1}, v{L(0)}, v{L(1)}, v{L(2)}", 'valu', earliest=lend(7, 2), deadline=k, after=rc)
    c3 = F(f"v_cmp_nge_f32 vcc, {hex(thi)}, v{X}", 'valu', earliest=lend(7, 2), deadline=k + 1, after=[c1])
    c4 = F("s_cbranch_vccnz L_slow", 'salu', earliest=k + 1, deadline=k + 8, after=[c3, barf[len(tiles) - 1]])
    c5 = F(f"v_cmp_nle_f32 vcc, {hex(tlo)}, v{X+1}", 'valu', earliest=k, deadline=k + 10, after=[c2, c4])
    c6 = F("s_cbranch_vccnz L_slow", 'salu', earliest=k, deadline=k + 18, after=[c5])
    fill += [c1, c2, c3, c4, c5, c6]
    prevw = None; prevst = None; wr = {}
    chains = [(h, T, qb) for h in range(2) for T, qb in HORD[hord[h]]]
    ygaps = {}; lasty = 0
    for h, T, qb in chains:
        if T == 3:
            E = hidx[(h, qb, T, 1, 1)]
            y1 = max(E + 15, lasty + 4); ygaps[h * 3 + qb] = (y1, y1 + 4); lasty = y1 + 4
    yset = {y for v in ygaps.values() for y in v}
    for ci, (h, T, qb) in enumerate(chains):
        gi = h * 3 + qb
        E = hidx[(h, qb, T, 1, 1)]
        o = O(qb, 4*h + T)
        if E + 3 >= len(slots):
            mu = [F(f"v_pk_mul_f32 v[{o+2*x}:{o+2*x+1}], v[{o+2*x}:{o+2*x+1}], v[{RL(qb)}:{RL(qb)+1}] op_sel_hi:[1,0]", 'valu', earliest=E + 3, deadline=E + 3, after=[rc[qb]]) for x in range(2)]
        else:
            mu = []
            for r in range(4):
                at = E + 3 + (0 if E + 3 in yset and E + 4 in rdgaps else r // 2)
                mu.append(F(f"v_mul_f32 v{o+r}, v{RL(qb)}, v{o+r}", 'valu', earliest=at, deadline=at, after=[rc[qb]]))
        cv = [F(f"v_cvt_pk_bf16_f32 v{o+x}, v{o+2*x}, v{o+2*x+1}", 'valu', earliest=E + 5, deadline=E + 5, after=mu) for x in range(2)]
        cv[1].after.append(cv[0])
        wf = F(f"ds_write_b64 v{OW(T)}, v[{o}:{o+1}] offset:{gi * 2048}", 'dsw', earliest=E + 6, deadline=E + 6, after=cv + ([prevw] if prevw else []), cost=12)
        prevw = wf
        fill += mu + cv + [wf]; wr.setdefault(gi, []).append(wf)
        if T < 3: continue
        rfs = [F(f"ds_read_b128 {R('v', O(qb, 4*h + jj), 4)}, v{OR_} offset:{gi * 2048 + jj * 1024}", 'ds', earliest=E + 8, deadline=E + 8, after=wr[gi]) for jj in range(2)]
        fill += rfs
        if ygaps[gi][0] < len(slots):
            fill.append(F("", 'salu', earliest=ygaps[gi][0] - 1, deadline=ygaps[gi][0] - 1, needs=rfs[1]))
        for jj in range(2):
            st = F(f"buffer_store_dwordx4 {R('v', O(qb, 4*h + jj), 4)}, v{VST}, s[{sO}:{sO+3}], s{sQB + qb} offen offset:{jj * 2048 + h * 128} {stpol}", 'st',
                   earliest=ygaps[gi][jj], deadline=ygaps[gi][jj], after=[prevst] if prevst else [], needs=rfs[jj], tag='O', cost=12)
            if ygaps[gi][jj] < len(slots): slots[ygaps[gi][jj]]['noscal'] = True
            prevst = st
            fill.append(st)
    lastuse = {}
    for i, (kind, t) in enumerate(tiles):
        if kind == 'K': lastuse[i] = sidx[(t, 3, 0, 3)]
        elif kind == 'V': lastuse[i] = pidx[(t, 7, 0, 1)]
    slot_of = lambda kind, t: dict(K=KS, V=VS, Q=QS, H=lambda t: VS(6 + t))[kind](t)
    for f in dma_f:
        prevs = [i for i in range(f.tag) if slot_of(*tiles[i]) == slot_of(*tiles[f.tag]) and i in lastuse]
        if prevs:
            bar = max(k0 for i, k0 in syncs if k0 < f.earliest)
            assert lastuse[prevs[-1]] < bar, (tiles[f.tag], f.earliest, bar, lastuse[prevs[-1]])
    assert p_first <= 4 * 9
    sc.nopfill = nopfill
    sc.over = 0
    sc.run(slots, fill)
    if verbose:
        for k, u in sc.log: print(k, slots[k].get('sid') or slots[k].get('pid') or slots[k].get('lid') or slots[k].get('hid'), u)
    if prof:
        e(stamp()); e("s_waitcnt lgkmcnt(0)"); e("s_waitcnt vmcnt(0)"); e(stamp()); e("s_waitcnt lgkmcnt(0)"); e(stamp())
        e("s_memrealtime s[52:53]")
        e("s_mov_b32 s42, 0x10000000\ns_mov_b32 s43, 0x20000")
        e("s_waitcnt lgkmcnt(0)")
        e(f"v_mov_b32 v0, s50\nv_mov_b32 v1, s52\nv_mov_b32 v2, s52\nv_mov_b32 v3, s52\nv_mov_b32 v4, 0")
        e(f"s_lshl_b32 s{sTMP}, s3, 2\ns_add_u32 s{sTMP}, s{sTMP}, s{sW}\ns_lshl_b32 s44, s{sTMP}, 4")
        e(f"buffer_store_dwordx4 v[0:3], v4, s[40:43], s44 offen")
        e(f"s_lshl_b32 s44, s{sTMP}, 8\ns_add_u32 s44, s44, 0x10000")
        e("v_mbcnt_lo_u32_b32 v4, -1, 0\nv_lshlrev_b32 v4, 3, v4")
        e("s_mov_b64 exec, 0xffffffff")
        e(f"buffer_store_dwordx2 v[254:255], v4, s[40:43], s44 offen")
    if nocomp:
        drop = ('v_mfma', 'v_smfmac', 'v_exp', 'v_cvt', 'ds_', 'v_pk_mul', 'v_mul_f32', 's_cbranch_vcc', 'v_accvgpr', 'v_lshlrev_b32 v2', 'v_and_b32 v2', 'v_lshlrev_b32 v30', 'v_and_b32 v31')
        k0 = next(i for i, l in enumerate(e.lines) if l.strip() == 's_barrier')
        e.lines = e.lines[:k0] + [l if not l.strip().endswith(' lds') else "    s_nop 0\n" + l for l in e.lines[k0:] if not l.strip().startswith(drop) and not (nocomp == 2 and l.strip().startswith('buffer_store_dwordx4') and 's[24' in l)]
    if dropl:
        e.lines = [l for l in e.lines if not any(all(y in l for y in x) for x in dropl)]
    e.label("L_end")
    e("s_endpgm")
    e.label("L_codeend")
    slow_path(e, sK, sV, sO, sW, sKV, sQO, AQ, AONE)
    src = HDR + f"""; @launch grid=(256,1,1) block=(256,1,1) lds=131072
.amdgcn_target "amdgcn-amd-amdhsa--gfx950"
.text
.globl {KNAME}
.p2align 8
.type {KNAME},@function
{KNAME}:
{e.text()}
.section .rodata,"a"
.p2align 6
.amdhsa_kernel {KNAME}
  .amdhsa_next_free_vgpr 512
  .amdhsa_next_free_sgpr 102
  .amdhsa_accum_offset 256
  .amdhsa_group_segment_fixed_size 0
  .amdhsa_kernarg_size 48
  .amdhsa_user_sgpr_count 2
  .amdhsa_user_sgpr_kernarg_segment_ptr 1
  .amdhsa_system_sgpr_workgroup_id_x 1
.end_amdhsa_kernel
"""
    return src, dict(nops=e.nops, over=sc.over, idle=sc.idle, slots=len(slots))

if __name__ == "__main__":
    src, info = gen(verbose=True)
    open("v5.s", "w").write(src)
    print(info)
```

```python
from asmlib import *

class F:
    n = 0
    def __init__(self, text, cls, earliest=0, deadline=10**9, after=(), needs=None, tag=None, cost=None, prio=0):
        self.text = text; self.cls = cls
        self.cost = cost if cost is not None else dict(ds=4, dsw=4, dma=8, st=8, exp=8, valu=4, salu=0, pk=4)[cls]
        self.earliest = earliest; self.deadline = deadline
        self.after = list(after)
        self.needs = needs
        self.tag = tag; self.done = False; self.idx = None; self.prio = prio
        F.n += 1; self.seq = F.n

class Sched:
    def __init__(self, e):
        self.e = e
        self.ds_issued = 0
        self.ds_known = 0
        self.vm = []
        self.over = 0
        self.idle = 0
        self.log = []
    def emit(self, f):
        if f.needs is not None: self.lgkm(f.needs)
        t = f.text() if callable(f.text) else f.text
        self.e(t)
        if f.cls in ('ds', 'dsw'):
            self.ds_issued += 1; f.idx = self.ds_issued
        if f.cls in ('dma', 'st'):
            self.vm.append(f.tag)
        f.done = True
    def lgkm_needed(self, f):
        return f.idx > self.ds_known
    def lgkm(self, f):
        assert f.done, f.text
        if f.idx > self.ds_known:
            n = self.ds_issued - f.idx
            n = min(n, 15)
            self.e(f"s_waitcnt lgkmcnt({n})")
            self.ds_known = self.ds_issued - n
    def vmwait_text(self, tag):
        last = max(i for i, x in enumerate(self.vm) if x == tag)
        return f"s_waitcnt vmcnt({len(self.vm) - 1 - last})"
    def ready(self, f, k):
        return (not f.done and f.earliest <= k and all(a.done for a in f.after)
                and (f.needs is None or f.needs.done))
    def run(self, slots, fillers, cap=8, drain=True):
        e = self.e
        pend = sorted(fillers, key=lambda f: (f.deadline, f.seq))
        for k, sl in enumerate(slots):
            if 'pre' in sl:
                sl['pre'](pend)
                pend = [f for f in pend if not f.done]
            nd = sl.get('needs')
            if nd is not None:
                self.force(nd, pend)
                self.lgkm(nd)
            for d in sl.get('deps', ()):
                self.force(d, pend)
            e(sl['text'])
            room = sl.get('cap', cap)
            used = []
            nxt = slots[k + 1].get('needs') if k + 1 < len(slots) else None
            scal = False
            if nxt is not None and nxt.done and self.lgkm_needed(nxt):
                self.lgkm(nxt); scal = True
            only = sl.get('only', False)
            if not scal:
                for f in pend:
                    if f.cls == 'salu' and self.ready(f, k) and (f.deadline <= k or not (only or sl.get('noscal'))):
                        self.emit(f); scal = True; used.append('s'); break
            for f in pend:
                if f.cls == 'salu' and self.ready(f, k) and f.deadline <= k:
                    self.emit(f); room -= 4; used.append('S')
            pks = [f for f in pend if f.cls == 'pk' and self.ready(f, k) and f.deadline <= k]
            if pks:
                room += 12; self.over += 12 + 4 * len(pks)
            chosen = []; full = room; blocked = []
            for f in pend:
                if f.cls in ('salu', 'pk') or f.done: continue
                if only and f.cls in ('valu', 'exp'): continue
                if not (f.earliest <= k and all(a.done or a in chosen_mem(chosen, f) for a in f.after) and (f.needs is None or f.needs.done)): continue
                must = f.deadline <= k
                if f.cost <= room or must or (room == full >= 8 and not chosen):
                    t = f.text() if callable(f.text) else f.text
                    if not must and e.peek(t) > 0:
                        blocked.append(f); continue
                    chosen.append(f); room -= f.cost
                if room <= 0 and not must: break
            for f in chosen:
                if f.cls in ('ds', 'dsw', 'dma', 'st'): self.emit(f); used.append(f.cls)
            for f in chosen:
                if not f.done: self.emit(f); used.append(f.cls)
            if getattr(self, 'nopfill', False) and not chosen and not pks and blocked and room >= 8:
                n = min(e.peek(blocked[0].text), 2 if scal else 3)
                e(f"s_nop {n-1}"); used.append('n')
            for f in pks:
                self.emit(f); used.append('pk')
            if room < 0: self.over += -room
            self.idle += max(room, 0)
            self.log.append((k, used))
            pend = [f for f in pend if not f.done]
        if drain:
            self.drain(pend)
            pend = []
        return pend
    def force(self, f, pend):
        if f.done: return
        for a in f.after: self.force(a, pend)
        if f.needs is not None: self.force(f.needs, pend)
        self.emit(f); self.over += f.cost
    def drain(self, pend):
        pend = list(pend)
        while pend:
            cand = [f for f in pend if all(a.done for a in f.after) and (f.needs is None or f.needs.done)]
            pick = None
            for f in cand:
                t = f.text() if callable(f.text) else f.text
                if self.e.peek(t) == 0: pick = f; break
            if pick is None: pick = cand[0]
            self.emit(pick); pend.remove(pick)

def chosen_mem(chosen, f):
    mem = ('ds', 'dsw', 'dma', 'st')
    if f.cls in mem:
        return [c for c in chosen if c.cls in mem]
    if f.cls == 'valu':
        return [c for c in chosen if c.cls == 'valu']
    return []
```

```python
from asmlib import *
MF = "v_mfma_f32_16x16x32_bf16"

def slow_path(e, sK, sV, sO, sW, sHEADKV, sQO, AQ, AONE, slot_base=0, qst=4096):
    O = lambda qb, T: (qb * 8 + T) * 4
    L = lambda qb: 96 + qb * 4
    S = lambda kb, qb: 108 + (kb * 3 + qb) * 4
    P = lambda ks, qb: 156 + (qb * 2 + ks) * 4
    NM = lambda qb: 180 + qb * 4
    KA = lambda s: 192 + s
    VA = lambda T: 196 + T
    KD = lambda p: 204 + p
    VD = lambda p: 208 + p
    OW = lambda i: 210 + i
    OR_, VST = 214, 215
    MX = lambda qb: 216 + qb
    lane, g, n, t1, t2, r_, c_ = 220, 221, 222, 223, 224, 225, 226
    AK = lambda kb, s: 48 + (kb * 4 + s) * 4
    AV = lambda ks, T: 112 + (T * 2 + ks) * 4
    sB, sSL, sT, sX = 44, 45, 46, 47
    e.label("L_slow")
    e("s_waitcnt vmcnt(0) lgkmcnt(0)")
    e("s_nop 15"); e("s_nop 15")
    e(f"v_mbcnt_lo_u32_b32 v{lane}, -1, 0")
    e(f"v_mbcnt_hi_u32_b32 v{lane}, -1, v{lane}")
    e(f"s_lshl_b32 s{sX}, s{sW}, 12")
    e(f"s_sub_u32 s{sB}, s{sHEADKV}, s{sX}")
    e(f"s_lshl_b32 s{sSL}, s{sW}, 14")
    if slot_base: e(f"s_add_u32 s{sSL}, s{sSL}, {slot_base}")
    e(f"v_lshrrev_b32 v{g}, 4, v{lane}")
    e(f"v_and_b32 v{n}, 15, v{lane}")
    e(f"v_xor_b32 v{t1}, v{g}, v{n}")
    e(f"v_lshlrev_b32 v{t1}, 4, v{t1}")
    e(f"v_lshl_add_u32 v{KD(0)}, v{g}, 8, v{t1}")
    for p in range(1, 4): e(f"v_xor_b32 v{KD(p)}, {p << 6}, v{KD(0)}")
    e(f"v_lshlrev_b32 v{t2}, 1, v{g}")
    e(f"v_xor_b32 v{t2}, v{t2}, v{n}")
    e(f"v_lshlrev_b32 v{t2}, 4, v{t2}")
    e(f"v_lshl_add_u32 v{VD(0)}, v{g}, 8, v{t2}")
    e(f"v_xor_b32 v{VD(1)}, 0x80, v{VD(0)}")
    e(f"v_lshrrev_b32 v{r_}, 2, v{n}")
    e(f"v_and_b32 v{c_}, 3, v{n}")
    e(f"v_lshl_add_u32 v{t2}, v{r_}, 4, v{c_}")
    e(f"v_lshl_add_u32 v{KA(0)}, v{t2}, 8, v{t1}")
    e(f"v_add_u32 v{KA(0)}, s{sSL}, v{KA(0)}")
    for s in range(1, 4): e(f"v_xor_b32 v{KA(s)}, {s*64}, v{KA(0)}")
    e(f"v_lshl_add_u32 v{t2}, v{g}, 4, v{r_}")
    e(f"v_lshlrev_b32 v{t2}, 8, v{t2}")
    e(f"v_and_b32 v{VA(0)}, 1, v{g}")
    e(f"v_lshl_add_u32 v{VA(0)}, v{VA(0)}, 2, v{r_}")
    e(f"v_lshl_add_u32 v{t2}, v{VA(0)}, 5, v{t2}")
    e(f"v_lshl_add_u32 v{VA(0)}, v{c_}, 3, v{t2}")
    e(f"v_add_u32 v{VA(0)}, s{sSL}, v{VA(0)}")
    for T in range(1, 8): e(f"v_xor_b32 v{VA(T)}, {T*32}, v{VA(0)}")
    e(f"v_lshrrev_b32 v{t1}, 1, v{g}")
    e(f"v_and_b32 v{t2}, 7, v{n}")
    e(f"v_xor_b32 v{t1}, v{t1}, v{t2}")
    e(f"v_lshlrev_b32 v{t1}, 4, v{t1}")
    e(f"v_lshl_add_u32 v{t1}, v{n}, 7, v{t1}")
    e(f"v_and_b32 v{t2}, 1, v{g}")
    e(f"v_lshl_add_u32 v{t1}, v{t2}, 3, v{t1}")
    e(f"v_add_u32 v{OW(0)}, s{sSL}, v{t1}")
    for i in range(1, 4): e(f"v_xor_b32 v{OW(i)}, {i*32}, v{OW(0)}")
    e(f"v_lshrrev_b32 v{t1}, 3, v{lane}")
    e(f"v_and_b32 v{t2}, 7, v{lane}")
    e(f"v_lshlrev_b32 v{VST}, 4, v{t2}")
    e(f"v_lshl_add_u32 v{VST}, v{t1}, 8, v{VST}")
    e(f"v_xor_b32 v{t2}, v{t2}, v{t1}")
    e(f"v_lshlrev_b32 v{t2}, 4, v{t2}")
    e(f"v_lshl_add_u32 v{t2}, v{t1}, 7, v{t2}")
    e(f"v_add_u32 v{OR_}, s{sSL}, v{t2}")
    def load(srd, vd):
        for p in range(4):
            e(f"s_add_u32 m0, s{sSL}, {p*4096}")
            e(f"s_add_u32 s{sX}, s{sT}, {p*4096}")
            for j in range(4):
                e(f"buffer_load_dwordx4 v{vd(p)}, s[{srd}:{srd+3}], s{sX} offen offset:{j*1024} lds")
    def kfrag():
        e("s_waitcnt vmcnt(0)")
        for kb in range(4):
            for s in range(4):
                e(f"ds_read_b128 {R('a', AK(kb, s), 4)}, v{KA(s)} offset:{kb*1024}")
        e("s_waitcnt lgkmcnt(0)")
    def smf(c0):
        for kb in range(4):
            for qb in range(3):
                for s in range(4):
                    c = c0(qb) if s == 0 else R('v', S(kb, qb), 4)
                    e(f"{MF} {R('v', S(kb, qb), 4)}, {R('a', AK(kb, s), 4)}, {R('a', AQ(qb, s), 4)}, {c}")
    def loop_end(lab):
        e(f"s_add_u32 s{sT}, s{sT}, 16384")
        e(f"s_sub_u32 s{sX}, s{sT}, s{sB}")
        e(f"s_cmp_lt_u32 s{sX}, 131072")
        e("s_nop 15")
        e(f"s_cbranch_scc1 {lab}")
    for qb in range(3): e(f"v_mov_b32 v{MX(qb)}, 0xff800000")
    e(f"s_mov_b32 s{sT}, s{sB}")
    e.label("L_slow1")
    load(sK, KD); kfrag(); smf(lambda qb: "0")
    for kb in range(4):
        for qb in range(3):
            b = S(kb, qb)
            e(f"v_max3_f32 v{MX(qb)}, v{MX(qb)}, v{b}, v{b+1}")
            e(f"v_max3_f32 v{MX(qb)}, v{MX(qb)}, v{b+2}, v{b+3}")
    loop_end("L_slow1")
    for qb in range(3):
        for sw in ("v_permlane32_swap_b32", "v_permlane16_swap_b32"):
            e(f"v_mov_b32 v{t1}, v{MX(qb)}")
            e(f"{sw} v{t1}, v{MX(qb)}")
            e(f"v_max_f32 v{MX(qb)}, v{MX(qb)}, v{t1}")
        for r in range(4): e(f"v_sub_f32 v{NM(qb)+r}, 0, v{MX(qb)}")
    for i in range(108): e(f"v_mov_b32 v{i}, 0")
    e(f"s_mov_b32 s{sT}, s{sB}")
    e("s_nop 7")
    e.label("L_slow2")
    load(sK, KD); kfrag()
    load(sV, lambda p: VD(p & 1))
    smf(lambda qb: R('v', NM(qb), 4))
    for kb in range(4):
        for qb in range(3):
            for r in range(4): e(f"v_exp_f32 v{S(kb,qb)+r}, v{S(kb,qb)+r}")
    for kb in range(4):
        for qb in range(3):
            b = S(kb, qb); p = P(kb // 2, qb) + (kb % 2) * 2
            e(f"v_cvt_pk_bf16_f32 v{p}, v{b}, v{b+1}")
            e(f"v_cvt_pk_bf16_f32 v{p+1}, v{b+2}, v{b+3}")
    e("s_waitcnt vmcnt(0)")
    for T in range(8):
        for ks in range(2):
            for h in range(2):
                e(f"ds_read_b64_tr_b16 {R('a', AV(ks, T) + 2*h, 2)}, v{VA(T)} offset:{(8*ks + 4*h)*256}")
        e("s_waitcnt lgkmcnt(0)")
    for qb in range(3):
        for ks in range(2):
            e(f"{MF} {R('v', L(qb), 4)}, {R('a', AONE, 4)}, {R('v', P(ks, qb), 4)}, {R('v', L(qb), 4)}")
    for T in range(8):
        for qb in range(3):
            for ks in range(2):
                e(f"{MF} {R('v', O(qb, T), 4)}, {R('a', AV(ks, T), 4)}, {R('v', P(ks, qb), 4)}, {R('v', O(qb, T), 4)}")
    loop_end("L_slow2")
    for qb in range(3): e(f"v_rcp_f32 v{MX(qb)}, v{L(qb)}")
    X = S(0, 0)
    for qb in range(3):
        e(f"s_add_u32 s{sX}, s{sQO}, {qb*qst}")
        for h in range(2):
            for T in range(4 * h, 4 * h + 4):
                o = O(qb, T)
                for r in range(4): e(f"v_mul_f32 v{o+r}, v{MX(qb)}, v{o+r}")
                e(f"v_cvt_pk_bf16_f32 v{o}, v{o}, v{o+1}")
                e(f"v_cvt_pk_bf16_f32 v{o+1}, v{o+2}, v{o+3}")
                e(f"ds_write_b64 v{OW(T % 4)}, v[{o}:{o+1}]")
            e("s_waitcnt lgkmcnt(0)")
            for jj in range(2):
                e(f"ds_read_b128 {R('v', X + jj*4, 4)}, v{OR_} offset:{jj*1024}")
            e("s_waitcnt lgkmcnt(0)")
            for jj in range(2):
                e(f"buffer_store_dwordx4 {R('v', X + jj*4, 4)}, v{VST}, s[{sO}:{sO+3}], s{sX} offen offset:{jj*2048 + h*128}")
            e("s_waitcnt vmcnt(0)")
    e("s_endpgm")
```

```python
import gen5, sys
V = dict(
 q0=dict(lag=None),
 q1=dict(lag=None, pad=[192]*12),
 q2=dict(lag=None, pad=[320]*12),
 q3=dict(lag=None, pad=[448]*12),
 q4=dict(lag=None, pad=[320]*5),
 q5=dict(lag=None, pad=[448]*5),
 q6=dict(lag=None, pad=[512,448,384,320,256,192,128,64]),
 q7=dict(lag=None, pad=[0,0,448,448,448,192]),
 q8=dict(lag=None, pad=[640,512,384,256,128]),
)
for n, kw in V.items():
    for pr in (0,1):
        src, info = gen5.gen(prof=bool(pr), **kw)
        open(f"cdna_kernels/{n}{'p' if pr else ''}.s", "w").write(src)
src, info = gen5.gen(prof=True, pstamps=True, pace=50)
open(f"psp.s", "w").write(src)
```

```python
import re

def regs(spec):
    m = re.fullmatch(r'([vas])\[(\d+):(\d+)\]', spec)
    if m:
        return [(m.group(1), i) for i in range(int(m.group(2)), int(m.group(3)) + 1)]
    m = re.fullmatch(r'([vas])(\d+)', spec)
    if m:
        return [(m.group(1), int(m.group(2)))]
    if spec in ('vcc',):
        return [('s', 'vcc')]
    if spec == 'm0':
        return [('s', 'm0')]
    if spec == 'exec':
        return [('s', 'exec')]
    return []

def R(kind, lo, n=1):
    return f"{kind}{lo}" if n == 1 else f"{kind}[{lo}:{lo+n-1}]"

TRANS = ('v_exp_f32', 'v_log_f32', 'v_rcp_f32', 'v_rsq_f32', 'v_sqrt_f32')

class Ins:
    def __init__(self, text):
        self.text = text
        t = text.strip()
        self.op = t.split()[0]
        rest = t[len(self.op):].strip()
        ops = []
        cur = ''; depth = 0
        for ch in rest:
            if ch == '[': depth += 1
            if ch == ']': depth -= 1
            if ch == ',' and depth == 0:
                ops.append(cur.strip()); cur = ''
            else:
                cur += ch
        if cur.strip(): ops.append(cur.strip())
        clean = []
        for o in ops:
            o0 = o.split()[0] if o.split() else o
            o0 = o0.lstrip('-')
            if o0.startswith('abs(') : o0 = o0[4:-1]
            if o0.startswith('|'): o0 = o0.strip('|')
            clean.append(o0)
        self.ops = clean
        op = self.op
        self.kind = 'other'
        self.w = []; self.r = []; self.srcc = []; self.ab = []
        self.passes = 0
        if op.startswith('v_smfmac'):
            self.kind = 'mfma'; self.passes = 8
            self.w = regs(clean[0]); self.ab = regs(clean[1]) + regs(clean[2]) + regs(clean[3]); self.srcc = regs(clean[0])
            self.r = self.ab + self.srcc
        elif op.startswith('v_mfma'):
            self.kind = 'mfma'
            self.passes = 4 if '16x16x32' in op else 8
            self.w = regs(clean[0]); self.ab = regs(clean[1]) + regs(clean[2]); self.srcc = regs(clean[3])
            self.r = self.ab + self.srcc
        elif op.startswith('v_permlane'):
            self.kind = 'valu'; self.perm = True
            self.w = regs(clean[0]) + regs(clean[1]); self.r = list(self.w)
        elif op.startswith('v_cmp'):
            self.kind = 'valu'
            self.w = regs(clean[0]); self.r = sum((regs(x) for x in clean[1:]), [])
        elif op.startswith('v_readfirstlane') or op.startswith('v_readlane'):
            self.kind = 'valu'
            self.w = regs(clean[0]); self.r = sum((regs(x) for x in clean[1:]), [])
        elif op.startswith('v_'):
            self.kind = 'valu'
            self.w = regs(clean[0]); self.r = sum((regs(x) for x in clean[1:]), [])
            if op.startswith('v_fmac') or 'dpp' in text or 'row_' in text:
                self.r += self.w
            if op.startswith('v_cndmask') and len(clean) == 3: self.r += regs('vcc')
        elif op.startswith('ds_read'):
            self.kind = 'ds'
            self.w = regs(clean[0]); self.r = regs(clean[1])
        elif op.startswith('ds_write'):
            self.kind = 'ds'
            self.r = sum((regs(x) for x in clean), [])
        elif op.startswith('buffer_load'):
            self.kind = 'vmem'
            if re.search(r'\blds\b', text):
                self.r = sum((regs(x) for x in clean), []) + regs('m0'); self.ldsdma = True
            else:
                self.w = regs(clean[0]); self.r = sum((regs(x) for x in clean[1:]), [])
        elif op.startswith('buffer_store'):
            self.kind = 'vmem'; self.store = True
            self.r = sum((regs(x) for x in clean), []); self.data = regs(clean[0])
        elif op.startswith('global_load'):
            self.kind = 'vmem'
            self.w = regs(clean[0]); self.r = sum((regs(x) for x in clean[1:]), [])
        elif op.startswith('s_'):
            self.kind = 'salu'
            if op in ('s_nop', 's_waitcnt', 's_barrier', 's_branch', 's_endpgm', 's_setprio', 's_sleep') or op.startswith('s_cbranch'):
                pass
            elif op.startswith('s_cmp'):
                self.r = sum((regs(x) for x in clean), [])
            else:
                self.w = regs(clean[0]); self.r = sum((regs(x) for x in clean[1:]), [])
                if 'saveexec' in op: self.w += regs('exec')
        self.trans = any(op.startswith(x) for x in TRANS)
        self.states = 1
        if op == 's_nop': self.states = int(clean[0]) + 1

def need(prod, cons):
    n = 0
    pw = set(prod.w); cr = set(cons.r); cw = set(cons.w)
    if prod.kind == 'mfma':
        big = {4: 8, 8: 12}[prod.passes]
        if cons.kind == 'mfma':
            if pw & set(cons.ab): n = max(n, big)
            if pw & set(cons.srcc):
                if not (cons.srcc == prod.w and cons.passes == prod.passes):
                    n = max(n, {4: 6, 8: 10}[prod.passes])
            if pw & cw and not (cons.srcc == prod.w):
                n = max(n, {4: 6, 8: 10}[prod.passes])
        elif cons.kind in ('valu', 'ds', 'vmem'):
            if pw & (cr | cw): n = max(n, big)
        if cons.kind == 'valu' and set(prod.srcc) & cw:
            n = max(n, {4: 3, 8: 7}[prod.passes])
    if prod.kind == 'valu':
        vw = {x for x in pw if x[0] in 'va'}
        sw = {x for x in pw if x[0] == 's'}
        if cons.kind == 'mfma' and vw & cr: n = max(n, 2)
        if cons.kind == 'valu':
            if getattr(cons, 'perm', False) and vw & cr: n = max(n, 2)
            if ('dpp' in cons.text or 'row_' in cons.text or 'quad_perm' in cons.text) and vw & cr: n = max(n, 2)
            if cons.op.startswith('v_readfirstlane') or cons.op.startswith('v_readlane'):
                if vw & cr: n = max(n, 1)
            if prod.trans and not cons.trans and vw & cr: n = max(n, 1)
            if prod.trans and cons.trans and vw & cr: n = max(n, 1)
            if sw & cr: n = max(n, 2)
        if cons.kind == 'vmem' and sw & cr: n = max(n, 5)
        if cons.kind == 'salu' and sw & cr: n = max(n, 1)
        if cons.kind == 'salu' and cons.op.startswith('s_cbranch_vcc') and ('s', 'vcc') in sw: n = max(n, 1)
    if prod.kind == 'salu':
        if ('s', 'm0') in pw and getattr(cons, 'ldsdma', False): n = max(n, 1)
    if getattr(prod, 'store', False) and len(prod.data) >= 3:
        if set(prod.data) & cw: n = max(n, 2)
    return n

class Emit:
    def __init__(self):
        self.lines = []
        self.hist = []
        self.nops = 0
    def raw(self, text):
        self.lines.append(text)
    def label(self, name):
        self.lines.append(name + ":")
    def comment(self, c):
        self.lines.append("    ; " + c)
    def __call__(self, text):
        for t in text.split("\n"):
            t = t.strip()
            if not t: continue
            m = re.match(r'(L_\w+):\s*(.*)', t)
            if m:
                self.lines.append(m.group(1) + ":"); t = m.group(2)
                if not t: continue
            ins = Ins(t)
            req = 0; dist = 0
            for p in reversed(self.hist[-24:]):
                k = need(p, ins) - dist
                if k > req: req = k
                dist += p.states
                if dist >= 20: break
            while req > 0:
                k = min(req, 16)
                nop = Ins(f"s_nop {k-1}")
                self.lines.append(f"    s_nop {k-1}")
                self.hist.append(nop); self.nops += 1
                req -= k
            self.lines.append("    " + t)
            self.hist.append(ins)
    def peek(self, text):
        ins = Ins(text); req = 0; dist = 0
        for p in reversed(self.hist[-24:]):
            k = need(p, ins) - dist
            if k > req: req = k
            dist += p.states
            if dist >= 20: break
        return req
    def fence(self, n=12):
        self(f"s_nop {n-1}")
    def text(self):
        return "\n".join(self.lines)

def check_seq(lines):
    hist = []; bad = []
    for t in lines:
        t = t.split(';')[0].strip()
        if not t or t.endswith(':'): continue
        ins = Ins(t); dist = 0
        for p in reversed(hist[-24:]):
            if need(p, ins) > dist: bad.append((p.text, t, need(p, ins), dist))
            dist += p.states
            if dist >= 20: break
        hist.append(ins)
    return bad
```

```python
import sys
from asmlib import *
from sched import *
from slowpath import slow_path

KNAME = "standalone__mha_softmax__near_ridge_kernel"
HDR = open('standalone__mha_softmax__near_ridge.s.ref').read().split('; Override launch')[0]
MF = "v_mfma_f32_16x16x32_bf16"
SMF = "v_smfmac_f32_16x16x64_bf16"

def gen1(ldpol="nt", stpol="nt", A=14, SYNC=13, SYNC1=10, SYNCH=(11, 26), hord=(0, 0), rot=True, prof=False, codepf=1,
        verbose=False, thi=0x4b800000, tlo=0x33800000, Am=None, pace=None, vsp=6, cap=99, nopfill=True, lag=(20, 86, 0),
        h0step=1, nocomp=False, touch=0, dropl=(), l7at=(13, 16), l6at=(1, 1, 1), pad=None, pstamps=False, offs=None, sp=9, win=None, align=True, stubs=(), warmq=1, smf=True):
    e = Emit(); sc = Sched(e)
    O = lambda qb, T: (qb * 8 + T) * 4
    L = lambda qb: 96 + qb * 4
    S = lambda kb, qb: 108 + (kb * 3 + qb) * 4
    P = lambda t, ks, qb: 156 + (t % 3) * 24 + (qb * 2 + ks) * 4
    VB = lambda T: 228 + T
    VHD, IDX = 232, 233
    RL = lambda qb: L(qb) + 2
    KA = lambda s: 234 + s
    VA = lambda T: 238 + T
    VKD, VVD = 246, 247
    OW = lambda i: 248 + i
    OR_, VST = 252, 253
    TMP = 40
    AQ = lambda qb, s: (qb * 4 + s) * 4
    AK = lambda kb, s: 48 + (kb * 4 + s) * 4
    AV = lambda buf, ks, T: 112 + buf * 64 + (T * 2 + ks) * 4
    AH = lambda h, T, tt, ks: 112 + h * 64 + ((T * 2 + tt) * 2 + ks) * 4
    AONE, ASP = 240, 244
    sQ, sK, sV, sO = 12, 16, 20, 24
    sQB = 56; sTO = 72
    sQO, sKV, sW4, sOFF, sV6, sW, sTMP, sC, sROT = 28, 29, 30, 31, 32, 34, 35, 36, 38
    KS = lambda t: (t % 4) * 16384
    VS = lambda t: 65536 + (t % 4) * 16384
    QS = lambda qb: 65536 + (qb + 1) * 16384
    tiles = [('K', 0), ('Q', 0), ('Q', 1), ('Q', 2)]
    tiles += [('K', 1)]
    for t in range(2, 8): tiles += [('K', t), ('V', t - 2)]
    tiles += [('H', 0), ('H', 1)]
    QV = lambda j: 16 + j
    QA = lambda s: 20 + s
    nstamp = [0]
    def stamp():
        i = nstamp[0]; nstamp[0] += 1
        a = 60 + 4 * (i % 2); b = 60 + 4 * ((i + 1) % 2)
        t = f"s_memrealtime s[{a}:{a+1}]\ns_memtime s[{a+2}:{a+3}]"
        if i > 0: t += f"\nv_writelane_b32 v254, s{b}, {i-1}\nv_writelane_b32 v255, s{b+2}, {i-1}"
        return t

    e("s_cmp_ge_u32 s2, 256")
    e("s_cbranch_scc1 L_end")
    e(f"s_load_dwordx2 s[{sK}:{sK+1}], s[0:1], 8")
    e(f"s_load_dwordx2 s[{sQ}:{sQ+1}], s[0:1], 0")
    e(f"s_load_dwordx2 s[{sV}:{sV+1}], s[0:1], 16")
    e(f"s_load_dwordx2 s[{sO}:{sO+1}], s[0:1], 24")
    if prof:
        e("s_load_dwordx2 s[40:41], s[0:1], 40")
        e("s_memrealtime s[50:51]")
    g, n, w, t1, t2 = TMP, TMP + 1, TMP + 2, TMP + 3, TMP + 4
    e(f"v_lshrrev_b32 v{w}, 6, v0")
    e(f"v_bfe_u32 v{g}, v0, 4, 2")
    e(f"v_readfirstlane_b32 s{sW}, v{w}")
    e(f"v_and_b32 v{n}, 15, v0")
    e(f"v_xor_b32 v{t1}, v{g}, v{n}")
    e(f"v_lshlrev_b32 v{t1}, 4, v{t1}")
    e(f"v_lshl_add_u32 v{QV(0)}, v{g}, 8, v{t1}")
    e(f"v_lshlrev_b32 v{t2}, 6, v{w}")
    e(f"v_xor_b32 v{VKD}, v{QV(0)}, v{t2}")
    e("s_and_b32 s3, s2, 7")
    e("s_lshl_b32 s3, s3, 5")
    e("s_lshr_b32 s2, s2, 3")
    e("s_add_u32 s3, s2, s3")
    e(f"s_lshl_b32 s{sW4}, s{sW}, 12")
    e(f"s_lshl_b32 s{sKV}, s3, 17")
    e(f"s_add_u32 s{sKV}, s{sKV}, s{sW4}")
    if rot:
        e(f"s_lshl_b32 s{sROT}, s3, 11")
        e(f"s_and_b32 s{sROT}, s{sROT}, 0x1c000")
    for d, sz in ((sK, 33554432), (sQ, 12582912)):
        e(f"s_mov_b32 s{d+2}, {sz}")
        e(f"s_mov_b32 s{d+3}, 0x20000")
    e(f"s_mul_i32 s{sQO}, s3, 49152")
    e(f"s_mul_i32 s{sTMP}, s{sW}, 12288")
    e(f"s_add_u32 s{sQO}, s{sQO}, s{sTMP}")
    for j in range(1, 4):
        e(f"v_xor_b32 v{QV(j)}, {j << 6}, v{QV(0)}")

    def kvoff(dst, t):
        if rot:
            return [f"s_add_u32 s{dst}, s{sROT}, {t * 16384}", f"s_and_b32 s{dst}, s{dst}, 0x1ffff", f"s_add_u32 s{dst}, s{dst}, s{sKV}"]
        return [f"s_add_u32 s{dst}, s{sKV}, {t * 16384}"]
    def piece_setup(p):
        i, j = divmod(p, 4)
        kind, t = tiles[i]
        if kind == 'H':
            return [f"s_add_u32 m0, s{sW4}, {VS(6 + t) + (j >> 1) * 2048 - t * 128 - (j & 1) * 1024}"]
        if j: return []
        base = dict(K=KS, V=VS, Q=QS)[kind](t)
        out = [f"s_add_u32 m0, s{sW4}, {base}"]
        if kind == 'Q': out.append(f"s_add_u32 s{sOFF}, s{sQO}, {t * 4096}")
        elif p == 0: out += kvoff(sTO, 0)
        return out
    def piece_text(p):
        i, j = divmod(p, 4)
        kind, t = tiles[i]
        pol = ldpol(i, j, kind) if callable(ldpol) else ldpol
        if kind == 'H':
            return f"buffer_load_dwordx4 v{VHD}, s[{sV}:{sV+3}], s{sTO + 6 + (j >> 1)} offen offset:{(j & 1) * 2048 + t * 128} {pol} lds"
        srd = dict(K=sK, V=sV, Q=sQ)[kind]
        vo = dict(K=VKD, V=VVD, Q=QV(j))[kind]
        so = sOFF if kind == 'Q' else sTO + t
        return f"buffer_load_dwordx4 v{vo}, s[{srd}:{srd+3}], s{so} offen offset:{j*1024} {pol} lds"
    npieces = 4 * len(tiles)
    nextp = [0]; capv = [cap]
    def issue_now(upto):
        while nextp[0] < min(upto, npieces, capv[0]):
            p = nextp[0]; nextp[0] += 1
            if p > 0:
                for t in piece_setup(p): e(t)
            sc.emit(F(piece_text(p), 'dma', tag=p // 4))
    for t in piece_setup(0): e(t)
    e("s_waitcnt lgkmcnt(0)")
    if pstamps: e(stamp())
    issue_now(12)
    if pstamps: e("s_waitcnt lgkmcnt(0)"); e(stamp())
    if codepf == 1:
        e("s_getpc_b64 s[4:5]")
        e.label("L_pc")
        e(f"s_lshl_b32 s6, s2, 2")
        e(f"s_add_u32 s6, s6, s{sW}")
        e(f"s_lshl_b32 s6, s6, 6")
        e("s_load_dword s7, s[4:5], s6")
        for k in range(2):
            e("s_add_u32 s6, s6, 0x2000")
            if k == 1: e("s_min_u32 s6, s6, L_codeend-L_pc-4")
            e(f"s_load_dword s{8+k}, s[4:5], s6")
    for d, sz in ((sV, 33554432), (sO, 12582912)):
        e(f"s_mov_b32 s{d+2}, {sz}")
        e(f"s_mov_b32 s{d+3}, 0x20000")
    for tt in range(1, 8):
        for t in kvoff(sTO + tt, tt): e(t)
    for qb in range(3):
        e(f"s_add_u32 s{sQB + qb}, s{sQO}, {qb * 4096}")
    if touch:
        e(f"s_lshl_b32 s10, s{sW}, 15")
        e(f"s_lshl_b32 s11, s3, 17")
        e(f"s_add_u32 s10, s10, s11")
        e(f"s_load_dword s11, s[{sV}:{sV+1}], s10")
        if touch > 1: e(f"s_load_dword s10, s[{sO}:{sO+1}], s{sQO}")
    w1 = TMP + 5
    e(f"v_and_b32 v{w1}, 1, v{w}")
    e(f"v_lshl_add_u32 v{t2}, v{w1}, 2, v{g}")
    e(f"v_lshlrev_b32 v{t2}, 1, v{t2}")
    e(f"v_xor_b32 v{t2}, v{t2}, v{n}")
    e(f"v_lshlrev_b32 v{t2}, 4, v{t2}")
    e(f"v_lshl_add_u32 v{VVD}, v{g}, 8, v{t2}")
    e(f"v_lshl_add_u32 v{QA(0)}, v{n}, 8, v{t1}")
    e(f"v_lshl_add_u32 v{QA(0)}, v{w}, 12, v{QA(0)}")
    e(f"v_add_u32 v{QA(0)}, 0x10000, v{QA(0)}")
    for s in range(1, 4):
        e(f"v_xor_b32 v{QA(s)}, {s*64}, v{QA(0)}")
    r_, c_ = TMP + 6, TMP + 7
    e(f"v_lshrrev_b32 v{r_}, 2, v{n}")
    e(f"v_and_b32 v{c_}, 3, v{n}")
    e(f"v_lshl_add_u32 v{t2}, v{r_}, 4, v{c_}")
    e(f"v_lshl_add_u32 v{KA(0)}, v{t2}, 8, v{t1}")
    for s in range(1, 4):
        e(f"v_xor_b32 v{KA(s)}, {s*64}, v{KA(0)}")
    g1 = TMP + 8
    e(f"v_and_b32 v{g1}, 1, v{g}")
    e(f"v_lshl_add_u32 v{t2}, v{g}, 4, v{r_}")
    e(f"v_lshlrev_b32 v{t2}, 8, v{t2}")
    e(f"v_lshl_add_u32 v{VA(0)}, v{g1}, 2, v{r_}")
    e(f"v_lshl_add_u32 v{t2}, v{VA(0)}, 5, v{t2}")
    e(f"v_lshl_add_u32 v{VA(0)}, v{c_}, 3, v{t2}")
    e(f"v_add_u32 v{VA(0)}, 0x10000, v{VA(0)}")
    for T in range(1, 8):
        e(f"v_xor_b32 v{VA(T)}, {T*32}, v{VA(0)}")
    e(f"v_lshrrev_b32 v{t2}, 1, v{r_}")
    e(f"v_lshl_add_u32 v{t2}, v{g1}, 1, v{t2}")
    e(f"v_lshlrev_b32 v{t2}, 5, v{t2}")
    e(f"v_lshl_add_u32 v{t2}, v{c_}, 3, v{t2}")
    e(f"v_lshl_add_u32 v{t2}, v{r_}, 7, v{t2}")
    e(f"v_lshl_add_u32 v{t2}, v{g}, 12, v{t2}")
    e(f"v_add_u32 v{VB(0)}, 0x10000, v{t2}")
    for T in range(1, 4):
        e(f"v_xor_b32 v{VB(T)}, {T*32}, v{VB(0)}")
    e(f"v_lshrrev_b32 v{t1}, 1, v{g}")
    e(f"v_and_b32 v{t2}, 7, v{n}")
    e(f"v_xor_b32 v{t1}, v{t1}, v{t2}")
    e(f"v_lshlrev_b32 v{t1}, 4, v{t1}")
    e(f"v_lshl_add_u32 v{t1}, v{n}, 7, v{t1}")
    e(f"v_lshl_add_u32 v{t1}, v{g1}, 3, v{t1}")
    e(f"v_lshl_add_u32 v{OW(0)}, v{w}, 14, v{t1}")
    for i in range(1, 4):
        e(f"v_xor_b32 v{OW(i)}, {i*32}, v{OW(0)}")
    e(f"v_bfe_u32 v{t1}, v0, 3, 3")
    e(f"v_and_b32 v{t2}, 7, v0")
    e(f"v_lshlrev_b32 v{VST}, 4, v{t2}")
    e(f"v_lshl_add_u32 v{VST}, v{t1}, 8, v{VST}")
    e(f"v_xor_b32 v{t2}, v{t2}, v{t1}")
    e(f"v_lshlrev_b32 v{t2}, 4, v{t2}")
    e(f"v_lshl_add_u32 v{t2}, v{t1}, 7, v{t2}")
    e(f"v_lshl_add_u32 v{OR_}, v{w}, 14, v{t2}")
    e(f"v_lshl_add_u32 v{t2}, v{w1}, 1, v{g1}")
    e(f"v_lshlrev_b32 v{t2}, 5, v{t2}")
    e(f"v_xor_b32 v{VHD}, v{VST}, v{t2}")
    e(f"v_mov_b32 v{t1}, 0x3f803f80")
    for i in range(4):
        e(f"v_accvgpr_write_b32 a{AONE+i}, v{t1}")
    if smf:
        e(f"v_cmp_gt_u32 vcc, 2, v{c_}")
        e(f"v_cndmask_b32 v{t1}, 0, v{t1}, vcc")
        e(f"v_and_b32 v{t2}, 1, v0")
        e(f"v_mul_u32_u24 v{t2}, 0xaaaa, v{t2}")
        e(f"v_or_b32 v{t2}, 0x4444, v{t2}")
        e(f"v_lshl_or_b32 v{IDX}, v{t2}, 16, v{t2}")
        for i in range(4):
            e(f"v_accvgpr_write_b32 a{ASP+i}, v{t1}")
    for i in range(12):
        e(f"v_mov_b32 v{L(0)+i}, 0")
    e(f"s_mov_b32 s{sC}, 0x3e0293ee")
    e(f"s_mov_b32 s{sC+1}, 0x3e0293ee")
    if pstamps: e(stamp()); e("s_waitcnt lgkmcnt(0)")
    issue_now(A)
    if pstamps: e(stamp())
    e(sc.vmwait_text(0))
    if pstamps: e("s_waitcnt lgkmcnt(0)"); e(stamp())
    e("s_barrier")
    e("s_waitcnt lgkmcnt(0)")
    for kb in range(4):
        for s in range(4):
            sc.emit(F(f"ds_read_b128 {R('a', AK(kb, s), 4)}, v{KA(s)} offset:{KS(0) + kb*1024}", 'ds'))

    slots = []; fill = []; marks = {}
    def smf_slot(t, kb, qb, s):
        c = "0" if s == 0 else R('v', S(kb, qb), 4)
        slots.append(dict(text=f"{MF} {R('v', S(kb, qb), 4)}, {R('a', AK(kb, s), 4)}, {R('a', AQ(qb, s), 4)}, {c}", sid=(t, kb, qb, s)))
    def l_slot(t, qb):
        if smf:
            slots.append(dict(text=f"{SMF} {R('v', L(qb), 4)}, {R('a', ASP, 4)}, {R('v', P(t, 0, qb), 8)}, v{IDX}", lid=(t, qb), cap=4))
        else:
            for ks in range(2):
                slots.append(dict(text=f"{MF} {R('v', L(qb), 4)}, {R('a', AONE, 4)}, {R('v', P(t, ks, qb), 4)}, {R('v', L(qb), 4)}", **({'lid': (t, qb)} if ks == 0 else {})))
    zat = {}
    for t in range(8):
        marks[('K', t)] = len(slots)
        order = [(kb, qb) for qb in range(3) for kb in range(4)] if t == 0 else [(kb, qb) for kb in range(4) for qb in range(3)]
        ncut = (48 - SYNC + 2) // 4
        for c, (kb, qb) in enumerate(order):
            if t >= 2 and c == ncut:
                if t == 2: l_slot(0, 0)
                zat[('V', t - 2)] = len(slots)
                l_slot(t - 2, 1); l_slot(t - 2, 2)
            if t == 7:
                for q2 in range(3):
                    if l6at[q2] == c: l_slot(6, q2)
            for s in range(4): smf_slot(t, kb, qb, s)
        if t < 2: continue
        u = t - 2
        marks[('V', u)] = len(slots)
        ncut = (48 - SYNC + 1) // 2
        for T in range(8):
            for qb in range(3):
                if u < 5 and T * 3 + qb == ncut:
                    zat[('K', t + 1)] = len(slots)
                    l_slot(u + 1, 0)
                if u == 5:
                    if T * 3 + qb in l7at: l_slot(7, l7at.index(T * 3 + qb))
                    if T * 3 + qb == (48 - SYNCH[0] + 1) // 2:
                        zat[('H', 0)] = len(slots)
                        l_slot(7, 2)
                for ks in range(2):
                    c = "0" if (u == 0 and ks == 0) else R('v', O(qb, T), 4)
                    slots.append(dict(text=f"{MF} {R('v', O(qb, T), 4)}, {R('a', AV(u%2, ks, T), 4)}, {R('v', P(u, ks, qb), 4)}, {c}",
                                      pid=(u, T, qb, ks)))
    HORD = [[(T, qb) for qb in range(3) for T in range(4)],
            [(T, qb) for T in range(4) for qb in range(2)] + [(T, 2) for T in range(4)],
            [(T, qb) for T in range(4) for qb in range(3)]]
    for h in range(2):
        marks[('H', h)] = len(slots)
        for T, qb in HORD[hord[h]]:
            for tt in range(2):
                for ks in range(2):
                    o = R('v', O(qb, 4*h + T), 4)
                    slots.append(dict(text=f"{MF} {o}, {R('a', AH(h, T, tt, ks), 4)}, {R('v', P(6 + tt, ks, qb), 4)}, {o}", hid=(h, qb, T, tt, ks)))
    sidx = {sl['sid']: k for k, sl in enumerate(slots) if 'sid' in sl}
    pidx = {sl['pid']: k for k, sl in enumerate(slots) if 'pid' in sl}
    lidx = {sl['lid']: k for k, sl in enumerate(slots) if 'lid' in sl}
    hidx = {sl['hid']: k for k, sl in enumerate(slots) if 'hid' in sl}
    lend = lambda t, qb: lidx[(t, qb)] + (0 if smf else 1)
    soft = {}
    for t in range(8):
        for kb in range(4):
            for qb in range(3):
                end = sidx[(t, kb, qb, 3)]
                dl = lidx[(t, qb)] - 2
                if t < 7: dl = min(dl, sidx[(t + 1, kb, qb, 0)] - 1)
                if t >= 2 and lag is not None:
                    dl = min(dl, marks[('K', t)] + lag[0] + max(0, lag[2] * (6 - t)) + ((kb * 3 + qb) * lag[1]) // 11)
                if t == 7: dl = min(dl, lidx[(7, qb)] - 2 - 16 * (3 - kb))
                b = S(kb, qb); p = P(t, kb // 2, qb) + (kb % 2) * 2
                er = end + 1
                ex = [F(f"v_exp_f32 v{b+r}, v{b+r}", 'exp', earliest=er, deadline=dl - 4 + r) for r in range(4)]
                cv = [F(f"v_cvt_pk_bf16_f32 v{p+x}, v{b+2*x}, v{b+2*x+1}", 'valu', earliest=er, deadline=dl, after=ex[2*x:2*x+2]) for x in range(2)]
                fill += ex + cv; soft[(t, kb, qb)] = ex + cv
                slots[lidx[(t, qb)]].setdefault('deps', []).extend(cv)
                if t < 7: slots[sidx[(t + 1, kb, qb, 0)]].setdefault('deps', []).extend(cv)
    def qstage(qb):
        def pre(pend):
            i = 1 + qb
            issue_now(4 * i + A)
            if qb == warmq and stubs:
                for x in range(len(stubs)):
                    e(f"s_cmp_eq_u32 s{sW}, {x}")
                    e(f"s_cbranch_scc1 L_stub{x}")
                e.label("L_ret")
                e("s_cmp_lg_u32 s3, s3")
            e(sc.vmwait_text(i))
            if prof: e(stamp())
            rd = []
            for s in range(4):
                f = F(f"ds_read_b128 {R('v', 4*s, 4)}, v{QA(s)} offset:{QS(qb) - 65536}", 'ds'); sc.emit(f); rd.append(f)
            issue_now(4 * i + A + 1)
            if qb:
                sc.drain([f for kb in range(4) for f in soft[(0, kb, qb - 1)] if not f.done])
            for s in range(4):
                sc.lgkm(rd[s])
                for j in range(4):
                    x = 4 * s + j; tt = 24 + 2 * j
                    e(f"v_lshlrev_b32 v{tt}, 16, v{x}")
                    e(f"v_and_b32 v{tt+1}, 0xffff0000, v{x}")
                for j in range(4):
                    tt = 24 + 2 * j
                    e(f"v_pk_mul_f32 v[{tt}:{tt+1}], v[{tt}:{tt+1}], s[{sC}:{sC+1}]")
                for j in range(4):
                    tt = 24 + 2 * j
                    e(f"v_cvt_pk_bf16_f32 v{tt}, v{tt}, v{tt+1}")
                for j in range(4):
                    tt = 24 + 2 * j
                    e(f"v_accvgpr_write_b32 a{AQ(qb, s)+j}, v{tt}")
                if s == 1: issue_now(4 * i + A + 2)
        return pre
    for qb in range(3):
        slots[16 * qb]['pre'] = qstage(qb)
        slots[16 * qb + 1]['pre'] = (lambda pend, qb=qb: issue_now(4 * (1 + qb) + A + 3))
    slots[48 - SYNC1 - 1]['pre'] = lambda pend: issue_now(16 + A)
    p_first = min(16 + A, cap)
    zat[('K', 1)] = 48 - SYNC1; zat[('K', 2)] = 96 - SYNC
    H0, H1 = marks[('H', 0)], marks[('H', 1)]
    zat[('H', 1)] = H1 - SYNCH[1]
    syncs = [(i, zat[tiles[i]]) for i in range(4, len(tiles))]
    rdplan = []
    for i, k0 in syncs:
        kind, t = tiles[i]
        if kind == 'K':
            for j in range(8):
                kb, sh = divmod(j, 2)
                at = k0 + ([2, 4, 7, 14, 19, 26, 31, 38] if t == 1 else [2, 5, 10, 17, 22, 29, 34, 41])[j]
                assert at > sidx[(t - 1, kb, 2, 3)]
                rdplan.append((i, at, [f"ds_read_b128 {R('a', AK(kb, s), 4)}, v{KA(s)} offset:{KS(t) + kb*1024}" for s in (2*sh, 2*sh+1)],
                               sidx[(t, kb, 0, 0)] if (sh and j > 1) else sidx[(t, kb, 0, 2 * sh)] if j < 2 else None))
        elif kind == 'V':
            for j in range(16):
                T, ks = divmod(j, 2)
                rdplan.append((i, k0 + 2 + 3 * j, [f"ds_read_b64_tr_b16 {R('a', AV(t%2, ks, T) + 2*hh, 2)}, v{VA(T)} offset:{VS(t) - 65536 + (8*ks + 4*hh)*256}" for hh in range(2)],
                               pidx[(t, T, 0, 0)] if ks else None))
        else:
            if t == 0: ats = [k0 + 1 + h0step * j for j in range(16)]
            else:
                lastk = hidx[(1, 0, 3, 1, 1)] - 7
                c1 = [k for k in range(k0 + 1, lastk + 1) if (k - H0) % 2 == 1]
                c2 = [k for k in c1 if (k - H0) % 4 == 1]
                ats = sorted(c1 + c2[:max(0, 16 - len(c1))])[:16]
                assert len(ats) == 16
            for j in range(16):
                T, tt, ks = j >> 2, (j >> 1) & 1, j & 1
                rdplan.append((i, ats[j], [f"ds_read_b64_tr_b16 {R('a', AH(t, T, tt, ks) + 2*hh, 2)}, v{VB(T)} offset:{VS(6 + t) - 65536 + tt*2048 + (8*ks + 4*hh)*128}" for hh in range(2)],
                               hidx[(t, 0, T, tt, 0)] if ks else None))
    zz = {k0 + d for _, k0 in syncs[:-1] for d in (-1, 0, 1)}
    for n_, (i, at, txs, use) in enumerate(rdplan):
        while use is not None and use - 1 in zz: use -= 1
        assert use is None or use - at >= 6, (tiles[i], at, use)
        rdplan[n_] = (i, at, txs, use)
    rdgaps = {at for _, at, _, _ in rdplan}
    waitgaps = {u - 1 for _, _, _, u in rdplan if u is not None} | {k0 - 1 for _, k0 in syncs} | {k0 for _, k0 in syncs}
    ggaps = sorted(({k0 + 1 for _, k0 in syncs} | {k + 1 for k in rdgaps}) - rdgaps - waitgaps)
    allpos = {}
    if offs is not None:
        want = {}
        for n_ in range(len(tiles) - 5):
            d = offs[min(n_, len(offs) - 1)]
            for j in range(4): want[4 * (5 + n_) + j] = syncs[n_][1] + d - sp * (3 - j)
        p_first = min(p_first, min(p for p in want if want[p] >= syncs[0][1]))
        capv[0] = p_first
        nxt = 10**9
        for p in range(npieces - 1, p_first - 1, -1):
            c = [k for k in ggaps if k + 3 <= nxt] if p % 4 != 3 else ggaps
            nxt = allpos[p] = min(c or ggaps[:1], key=lambda k: abs(k - want[p]))
    elif pace is None:
        np_ = p_first
        for n_, (i, k0) in enumerate(syncs):
            k1 = syncs[n_ + 1][1] if n_ + 1 < len(syncs) else k0 + 48
            Ai = A if Am is None else (Am[min(n_, len(Am) - 1)] if isinstance(Am, (list, tuple)) else Am)
            ps = list(range(np_, max(np_, min(npieces, 4 * i + 4 + Ai)))); np_ += len(ps)
            for j, p in enumerate(ps):
                allpos[p] = k0 + 1 + ((j if len(ps) > 4 else p - (4 * i + Ai)) * (k1 - k0)) // max(4, len(ps))
    else:
        for p in range(p_first, npieces):
            ti, j = divmod(p, 4)
            kind, t = tiles[ti]
            kt = t if kind == 'K' else t + 2 if kind == 'V' else 7
            y = pace[kt] if isinstance(pace, (list, tuple)) else pace
            base = zat[('K', max(kt - 1, 1))]
            vs = vsp if y > 30 else 12
            allpos[p] = base + y - 12 * (3 - j) if kind == 'K' else base + y + vs * (j + 1 + (4 * (t + 1) if kind == 'H' else 0))
    last = syncs[0][1] - 2
    for p in range(p_first, npieces):
        last = allpos[p] = min(k for k in ggaps if k >= max(allpos[p], last + 3))
    def wof(p):
        if win is None: return 63
        n_ = max(j for j, (_, k0) in enumerate(syncs) if k0 <= allpos[p]); x = n_ + (allpos[p] - 1 - syncs[n_][1]) / (syncs[n_ + 1][1] - syncs[n_][1]); n0 = min(int(x), len(win) - 1); n1 = min(n0 + 1, len(win) - 1)
        v = int(win[n0] + (win[n1] - win[n0]) * (x - int(x)) + (0.125, 0.625, 0.375, 0.875)[p % 4])
        return v if v < 12 else 63
    barf = {}; dma_f = []; prev = None; np_ = p_first
    for n_, (i, k0) in enumerate(syncs):
        k1 = syncs[n_ + 1][1] if n_ + 1 < len(syncs) else 10**9
        wz = wof(np_) if np_ < npieces and allpos[np_] == k0 + 1 else 63
        wt = F((lambda i=i, wz=wz: sc.vmwait_text(i, wz)), 'salu', earliest=k0 - 1, deadline=k0 - 1, after=[x for x in dma_f if x.tag <= i])
        br = F("s_barrier", 'salu', earliest=k0, deadline=k0, after=[wt])
        fill += [wt, br]; barf[i] = br
        if i < len(tiles) - 1: slots[k0]['only'] = True
        if prof:
            fill.append(F(stamp, 'salu', earliest=k0, deadline=k0, after=[br], tag='stamp'))
        while np_ < npieces and allpos[np_] < k1:
            p = np_; np_ += 1
            at = allpos[p]
            aft = [prev] if prev else []
            for tx in piece_setup(p):
                sf = F(tx, 'salu', earliest=max(at - 9, 48 - SYNC1 - 1), deadline=at - (1 if win is None else 2), after=aft); fill.append(sf); aft = [sf]
            if wof(p) < 63 and at != k0 + 1:
                sf = F(f"s_waitcnt vmcnt({wof(p)})", 'salu', earliest=at - 2 if at - 1 in waitgaps else at - 1, deadline=at - 1, after=aft); fill.append(sf); aft = [sf]
            df = F(piece_text(p), 'dma', earliest=at, deadline=at, after=aft + [br], tag=p // 4)
            slots[at]['only'] = True
            fill.append(df); dma_f.append(df); prev = df
    if pad:
        for n_, cyc in enumerate(pad):
            k0 = syncs[n_][1]
            for x in range(8):
                c = cyc // 8 // 4
                if c: slots[k0 + 3 + 5 * x]['pre'] = (lambda pend, c=c: [e(f"s_nop {min(c - 16 * y, 16) - 1}") for y in range((c + 15) // 16)])
    prevrd = None
    for i, at, txs, use in rdplan:
        for tx in txs:
            f = F(tx, 'ds', earliest=at, deadline=at, after=[barf[i]] + ([prevrd] if prevrd else []))
            fill.append(f); prevrd = f
        if use is not None: slots[use]['needs'] = f
    rc = []
    for qb in range(3):
        k = lend(7, qb)
        a = [F(f"v_add_f32 v{L(qb)}, v{L(qb)}, v{L(qb)+1}", 'valu', earliest=k + 1, deadline=hidx[(0, qb, 0, 0, 0)] + 1)]; fill += a
        f = F(f"v_rcp_f32 v{RL(qb)}, v{L(qb)}", 'exp', earliest=k + 1, deadline=hidx[(0, qb, 0, 0, 0)] + 2, after=a); fill.append(f); rc.append(f)
    k = zat[('H', 1)]
    X = KA(0)
    c1 = F(f"v_max3_f32 v{X}, v{L(0)}, v{L(1)}, v{L(2)}", 'valu', earliest=lend(7, 2), deadline=k, after=rc)
    c2 = F(f"v_min3_f32 v{X+1}, v{L(0)}, v{L(1)}, v{L(2)}", 'valu', earliest=lend(7, 2), deadline=k, after=rc)
    c3 = F(f"v_cmp_nge_f32 vcc, {hex(thi)}, v{X}", 'valu', earliest=lend(7, 2), deadline=k + 1, after=[c1])
    c4 = F("s_cbranch_vccnz L_slow", 'salu', earliest=k + 1, deadline=k + 8, after=[c3, barf[len(tiles) - 1]])
    c5 = F(f"v_cmp_nle_f32 vcc, {hex(tlo)}, v{X+1}", 'valu', earliest=k, deadline=k + 10, after=[c2, c4])
    c6 = F("s_cbranch_vccnz L_slow", 'salu', earliest=k, deadline=k + 18, after=[c5])
    fill += [c1, c2, c3, c4, c5, c6]
    prevw = None; prevst = None; wr = {}
    chains = [(h, T, qb) for h in range(2) for T, qb in HORD[hord[h]]]
    ygaps = {}; lasty = 0
    for h, T, qb in chains:
        if T == 3:
            E = hidx[(h, qb, T, 1, 1)]
            y1 = max(E + 15, lasty + 4); ygaps[h * 3 + qb] = (y1, y1 + 4); lasty = y1 + 4
    yset = {y for v in ygaps.values() for y in v}
    for ci, (h, T, qb) in enumerate(chains):
        gi = h * 3 + qb
        E = hidx[(h, qb, T, 1, 1)]
        o = O(qb, 4*h + T)
        if E + 3 >= len(slots):
            mu = [F(f"v_pk_mul_f32 v[{o+2*x}:{o+2*x+1}], v[{o+2*x}:{o+2*x+1}], v[{RL(qb)}:{RL(qb)+1}] op_sel_hi:[1,0]", 'valu', earliest=E + 3, deadline=E + 3, after=[rc[qb]]) for x in range(2)]
        else:
            mu = []
            for r in range(4):
                at = E + 3 + (0 if E + 3 in yset and E + 4 in rdgaps else r // 2)
                mu.append(F(f"v_mul_f32 v{o+r}, v{RL(qb)}, v{o+r}", 'valu', earliest=at, deadline=at, after=[rc[qb]]))
        cv = [F(f"v_cvt_pk_bf16_f32 v{o+x}, v{o+2*x}, v{o+2*x+1}", 'valu', earliest=E + 5, deadline=E + 5, after=mu) for x in range(2)]
        cv[1].after.append(cv[0])
        wf = F(f"ds_write_b64 v{OW(T)}, v[{o}:{o+1}] offset:{gi * 2048}", 'dsw', earliest=E + 6, deadline=E + 6, after=cv + ([prevw] if prevw else []), cost=12)
        prevw = wf
        fill += mu + cv + [wf]; wr.setdefault(gi, []).append(wf)
        if T < 3: continue
        rfs = [F(f"ds_read_b128 {R('v', O(qb, 4*h + jj), 4)}, v{OR_} offset:{gi * 2048 + jj * 1024}", 'ds', earliest=E + 8, deadline=E + 8, after=wr[gi]) for jj in range(2)]
        fill += rfs
        if ygaps[gi][0] < len(slots):
            fill.append(F("", 'salu', earliest=ygaps[gi][0] - 1, deadline=ygaps[gi][0] - 1, needs=rfs[1]))
        for jj in range(2):
            st = F(f"buffer_store_dwordx4 {R('v', O(qb, 4*h + jj), 4)}, v{VST}, s[{sO}:{sO+3}], s{sQB + qb} offen offset:{jj * 2048 + h * 128} {stpol}", 'st',
                   earliest=ygaps[gi][jj], deadline=ygaps[gi][jj], after=[prevst] if prevst else [], needs=rfs[jj], tag='O', cost=12)
            if ygaps[gi][jj] < len(slots): slots[ygaps[gi][jj]]['noscal'] = True
            prevst = st
            fill.append(st)
    lastuse = {}
    for i, (kind, t) in enumerate(tiles):
        if kind == 'K': lastuse[i] = sidx[(t, 3, 0, 3)]
        elif kind == 'V': lastuse[i] = pidx[(t, 7, 0, 1)]
    slot_of = lambda kind, t: dict(K=KS, V=VS, Q=QS, H=lambda t: VS(6 + t))[kind](t)
    for f in dma_f:
        prevs = [i for i in range(f.tag) if slot_of(*tiles[i]) == slot_of(*tiles[f.tag]) and i in lastuse]
        if prevs:
            bar = max(k0 for i, k0 in syncs if k0 < f.earliest)
            assert lastuse[prevs[-1]] < bar, (tiles[f.tag], f.earliest, bar, lastuse[prevs[-1]])
    assert p_first <= 4 * 9
    sc.nopfill = nopfill
    for x, k in enumerate(stubs):
        fill.append(F(f"L_stub{x}: s_cbranch_scc1 L_ret", 'salu', earliest=k, deadline=k))
    for k, sl in enumerate(slots): sl['text'] += f"\nL_g{k}:"
    lastoff = [allpos.get(4 * i + 3, -1) - syncs[i - 5][1] for i in range(5, len(tiles))]
    sc.over = 0
    sc.run(slots, fill)
    if verbose:
        for k, u in sc.log: print(k, slots[k].get('sid') or slots[k].get('pid') or slots[k].get('lid') or slots[k].get('hid'), u)
    e.label("L_fastend")
    if prof:
        e(stamp()); e("s_waitcnt lgkmcnt(0)"); e("s_waitcnt vmcnt(0)"); e(stamp()); e("s_waitcnt lgkmcnt(0)"); e(stamp())
        e("s_memrealtime s[52:53]")
        e("s_mov_b32 s42, 0x10000000\ns_mov_b32 s43, 0x20000")
        e("s_waitcnt lgkmcnt(0)")
        e(f"v_mov_b32 v0, s50\nv_mov_b32 v1, s52\nv_mov_b32 v2, s52\nv_mov_b32 v3, s52\nv_mov_b32 v4, 0")
        e(f"s_lshl_b32 s{sTMP}, s3, 2\ns_add_u32 s{sTMP}, s{sTMP}, s{sW}\ns_lshl_b32 s44, s{sTMP}, 4")
        e(f"buffer_store_dwordx4 v[0:3], v4, s[40:43], s44 offen")
        e(f"s_lshl_b32 s44, s{sTMP}, 8\ns_add_u32 s44, s44, 0x10000")
        e("v_mbcnt_lo_u32_b32 v4, -1, 0\nv_lshlrev_b32 v4, 3, v4")
        e("s_mov_b64 exec, 0xffffffff")
        e(f"buffer_store_dwordx2 v[254:255], v4, s[40:43], s44 offen")
    if nocomp:
        drop = ('v_mfma', 'v_smfmac', 'v_exp', 'v_cvt', 'ds_', 'v_pk_mul', 'v_mul_f32', 's_cbranch_vcc', 'v_accvgpr', 'v_lshlrev_b32 v2', 'v_and_b32 v2', 'v_lshlrev_b32 v30', 'v_and_b32 v31')
        k0 = next(i for i, l in enumerate(e.lines) if l.strip() == 's_barrier')
        e.lines = e.lines[:k0] + [l if not l.strip().endswith(' lds') else "    s_nop 0\n" + l for l in e.lines[k0:] if not l.strip().startswith(drop) and not (nocomp == 2 and l.strip().startswith('buffer_store_dwordx4') and 's[24' in l)]
    if dropl:
        e.lines = [l for l in e.lines if not any(all(y in l for y in x) for x in dropl)]
    e.label("L_end")
    e("s_endpgm")
    e.label("L_codeend")
    slow_path(e, sK, sV, sO, sW, sKV, sQO, AQ, AONE)
    PAD = "" if not align else f".p2align 12\n.fill {align} * 64, 4, 0xbf800000\n" if align is not True else "@PAD@"
    src = HDR + f"""; @launch grid=(256,1,1) block=(256,1,1) lds=131072
.amdgcn_target "amdgcn-amd-amdhsa--gfx950"
.text
.globl {KNAME}
{PAD}.p2align 8
.type {KNAME},@function
{KNAME}:
{e.text()}
.section .rodata,"a"
.p2align 6
.amdhsa_kernel {KNAME}
  .amdhsa_next_free_vgpr 512
  .amdhsa_next_free_sgpr 102
  .amdhsa_accum_offset 256
  .amdhsa_group_segment_fixed_size 0
  .amdhsa_kernarg_size 48
  .amdhsa_user_sgpr_count 2
  .amdhsa_user_sgpr_kernarg_segment_ptr 1
  .amdhsa_system_sgpr_workgroup_id_x 1
.end_amdhsa_kernel
"""
    gaddr = {}
    if align is True:
        import subprocess, re
        sys.path.insert(0, 'cdna_kernels')
        from cdna_launch import with_harness_metadata
        def endoff(n):
            t = src.replace("@PAD@", f".p2align 12\n.fill {n} * 64, 4, 0xbf800000\n")
            open('_a.s', 'w').write(with_harness_metadata(t, KNAME, 6, launch_lists=True))
            subprocess.run(["clang", "-x", "assembler", "-target", "amdgcn-amd-amdhsa", "-mcpu=gfx950", "-c", "_a.s", "-o", "_a.o"], check=True)
            nm = subprocess.run(["llvm-objdump", "-t", "_a.o"], capture_output=True, text=True).stdout
            for m in re.finditer(r"([0-9a-f]+) l .*L_g(\d+)", nm): gaddr[int(m.group(2))] = int(m.group(1), 16)
            return t, int(re.search(r"([0-9a-f]+) l .*L_fastend", nm).group(1), 16) + 4
        n = ((-endoff(0)[1]) % 4096) // 256
        src, eo = endoff(n)
        assert (-eo) % 4096 < 256, hex(eo)
    import re
    src = re.sub(r"\n *L_g\d+:", "", src)
    freeg = [k for k, u in sc.log if not any(x in ('s', 'S', 'n') for x in u) and not slots[k].get('only') and not slots[k].get('noscal') and k not in sc.waited]
    return src, dict(gaddr=gaddr, freeg=freeg, nops=e.nops, over=sc.over, idle=sc.idle, slots=len(slots), lastoff=lastoff)

def gen(warm=True, **kw):
    stubs = (100, 300, 500) if warm else ()
    for it in range(6):
        src, info = gen1(stubs=stubs, **kw)
        ga = info.pop('gaddr'); fg = set(info.pop('freeg')) | set(stubs)
        if not warm: return src, info
        last = max(ga.values()) // 4096
        new = tuple(min(k for k in fg if ga[k] >= (last - 2 + x) * 4096) for x in range(3))
        info['stuboff'] = [ga[k] % 4096 for k in new]
        if new == stubs: return src, info
        stubs = new
        kw['verbose'] = False
    raise Exception("no fixpoint")

if __name__ == "__main__":
    src, info = gen(verbose=True)
    open("v5.s", "w").write(src)
    print(info)
```

```python
from asmlib import *

class F:
    n = 0
    def __init__(self, text, cls, earliest=0, deadline=10**9, after=(), needs=None, tag=None, cost=None, prio=0):
        self.text = text; self.cls = cls
        self.cost = cost if cost is not None else dict(ds=4, dsw=4, dma=8, st=8, exp=8, valu=4, salu=0, pk=4)[cls]
        self.earliest = earliest; self.deadline = deadline
        self.after = list(after)
        self.needs = needs
        self.tag = tag; self.done = False; self.idx = None; self.prio = prio
        F.n += 1; self.seq = F.n

class Sched:
    def __init__(self, e):
        self.e = e
        self.ds_issued = 0
        self.ds_known = 0
        self.vm = []
        self.over = 0
        self.idle = 0
        self.waited = set()
        self.log = []
    def emit(self, f):
        if f.needs is not None: self.lgkm(f.needs)
        t = f.text() if callable(f.text) else f.text
        self.e(t)
        if f.cls in ('ds', 'dsw'):
            self.ds_issued += 1; f.idx = self.ds_issued
        if f.cls in ('dma', 'st'):
            self.vm.append(f.tag)
        f.done = True
    def lgkm_needed(self, f):
        return f.idx > self.ds_known
    def lgkm(self, f):
        assert f.done, f.text
        if f.idx > self.ds_known:
            n = self.ds_issued - f.idx
            n = min(n, 15)
            self.e(f"s_waitcnt lgkmcnt({n})")
            self.ds_known = self.ds_issued - n
    def vmwait_text(self, tag, cap=63):
        last = max(i for i, x in enumerate(self.vm) if x == tag)
        return f"s_waitcnt vmcnt({min(cap, len(self.vm) - 1 - last)})"
    def ready(self, f, k):
        return (not f.done and f.earliest <= k and all(a.done for a in f.after)
                and (f.needs is None or f.needs.done))
    def run(self, slots, fillers, cap=8, drain=True):
        e = self.e
        pend = sorted(fillers, key=lambda f: (f.deadline, f.seq))
        for k, sl in enumerate(slots):
            if 'pre' in sl:
                sl['pre'](pend)
                pend = [f for f in pend if not f.done]
            nd = sl.get('needs')
            if nd is not None:
                self.force(nd, pend)
                self.lgkm(nd)
            for d in sl.get('deps', ()):
                self.force(d, pend)
            e(sl['text'])
            room = sl.get('cap', cap)
            used = []
            nxt = slots[k + 1].get('needs') if k + 1 < len(slots) else None
            scal = False
            if nxt is not None and nxt.done and self.lgkm_needed(nxt):
                self.lgkm(nxt); scal = True; self.waited.add(k)
            only = sl.get('only', False)
            if not scal:
                for f in pend:
                    if f.cls == 'salu' and self.ready(f, k) and (f.deadline <= k or not (only or sl.get('noscal'))):
                        self.emit(f); scal = True; used.append('s'); break
            for f in pend:
                if f.cls == 'salu' and self.ready(f, k) and f.deadline <= k:
                    self.emit(f); room -= 4; used.append('S')
            pks = [f for f in pend if f.cls == 'pk' and self.ready(f, k) and f.deadline <= k]
            if pks:
                room += 12; self.over += 12 + 4 * len(pks)
            chosen = []; full = room; blocked = []
            for f in pend:
                if f.cls in ('salu', 'pk') or f.done: continue
                if only and f.cls in ('valu', 'exp'): continue
                if not (f.earliest <= k and all(a.done or a in chosen_mem(chosen, f) for a in f.after) and (f.needs is None or f.needs.done)): continue
                must = f.deadline <= k
                if f.cost <= room or must or (room == full >= 8 and not chosen):
                    t = f.text() if callable(f.text) else f.text
                    if not must and e.peek(t) > 0:
                        blocked.append(f); continue
                    chosen.append(f); room -= f.cost
                if room <= 0 and not must: break
            for f in chosen:
                if f.cls in ('ds', 'dsw', 'dma', 'st'): self.emit(f); used.append(f.cls)
            for f in chosen:
                if not f.done: self.emit(f); used.append(f.cls)
            if getattr(self, 'nopfill', False) and not chosen and not pks and blocked and room >= 8:
                n = min(e.peek(blocked[0].text), 2 if scal else 3)
                e(f"s_nop {n-1}"); used.append('n')
            for f in pks:
                self.emit(f); used.append('pk')
            if room < 0: self.over += -room
            self.idle += max(room, 0)
            self.log.append((k, used))
            pend = [f for f in pend if not f.done]
        if drain:
            self.drain(pend)
            pend = []
        return pend
    def force(self, f, pend):
        if f.done: return
        for a in f.after: self.force(a, pend)
        if f.needs is not None: self.force(f.needs, pend)
        self.emit(f); self.over += f.cost
    def drain(self, pend):
        pend = list(pend)
        while pend:
            cand = [f for f in pend if all(a.done for a in f.after) and (f.needs is None or f.needs.done)]
            pick = None
            for f in cand:
                t = f.text() if callable(f.text) else f.text
                if self.e.peek(t) == 0: pick = f; break
            if pick is None: pick = cand[0]
            self.emit(pick); pend.remove(pick)

def chosen_mem(chosen, f):
    mem = ('ds', 'dsw', 'dma', 'st')
    if f.cls in mem:
        return [c for c in chosen if c.cls in mem]
    if f.cls == 'valu':
        return [c for c in chosen if c.cls == 'valu']
    return []
```

```python
import gen5, sys
V = dict(
 c1=dict(A=14, cap=26, Am=[10,10,10,11,11,12,12,13,13,14], win=[5,3.5,3,3.5,4,4,4.5,5,5,5,5,5]),
 c2=dict(A=14, cap=26, Am=[10,10,10,11,11,12,12,13,13,13], win=[5,3.5,3,3.5,4,5,5,6,6,6,6,6]),
 c3=dict(A=14, cap=24, Am=[8,9,9,10,10,11,12,12,13,13], win=[4,3,3,3.5,4,4.5,5,5,6,6,6]),
 c4=dict(A=14, cap=26, Am=[10,10,10,10,11,11,12,12,13], win=[5,3.5,3,4,4.5,5,6,6,6,6,6]),
 c5=dict(A=14, cap=26, Am=[10,10,10,10,11,11,11,12,12], win=[5,3.5,3,3.5,4,4,5,5,6,6,6]),
 c6=dict(A=14, cap=28, Am=[12,12,12,12,12,12,13,13,13], win=[6,4,3,3,3.5,4,4.5,5,6,6,6]),
)
for n, kw in V.items():
    for pr in (0,1):
        src, info = gen5.gen(prof=bool(pr), lag=None, **kw)
        open(f"k{n}{'p' if pr else ''}.s", "w").write(src)
    print(n, info)
```

```python
import sys
from asmlib import *
from sched import *
from slowpath import slow_path

KNAME = "standalone__mha_softmax__near_ridge_kernel"
HDR = open('standalone__mha_softmax__near_ridge.s.ref').read().split('; Override launch')[0]
MF = "v_mfma_f32_16x16x32_bf16"
SMF = "v_smfmac_f32_16x16x64_bf16"

def gen1(ldpol="nt", stpol="nt", A=14, SYNC=13, SYNC1=10, SYNCH=(11, 26), hord=(0, 0), rot=True, prof=False, codepf=1,
        verbose=False, thi=0x4b800000, tlo=0x33800000, Am=None, pace=None, vsp=6, cap=99, nopfill=True, lag=(20, 86, 0),
        h0step=1, nocomp=False, touch=0, dropl=(), l7at=(13, 16), l6at=(1, 1, 1), pad=None, pstamps=False, offs=None, sp=9, win=None, align=True, stubs=(), warmq=1, ga=0, wa=4, rsh=3, smf=True, dummy=None, stag=None, gb=5, pwin=None, lwin=None, lthr=2, lpw=None, rmix=None, zig=False, hsw=False, qlin=False):
    e = Emit(); sc = Sched(e)
    O = lambda qb, T: (qb * 8 + T) * 4
    L = lambda qb: 96 + qb * 4
    S = lambda kb, qb: 108 + (kb * 3 + qb) * 4
    P = lambda t, ks, qb: 156 + (t % 3) * 24 + (qb * 2 + ks) * 4
    VB = lambda T: 228 + T
    VHD, IDX = 232, 233
    RL = lambda qb: L(qb) + 2
    KA = lambda s: 234 + s
    VA = lambda T: 238 + T
    VKD, VVD = 246, 247
    OW = lambda i: 248 + i
    OR_, VST = 252, 253
    TMP = 40
    AQ = lambda qb, s: (qb * 4 + s) * 4
    AK = lambda kb, s: 48 + (kb * 4 + s) * 4
    AV = lambda buf, ks, T: 112 + buf * 64 + (T * 2 + ks) * 4
    AH = lambda h, T, tt, ks: 112 + h * 64 + ((T * 2 + tt) * 2 + ks) * 4
    AONE, ASP = 240, 244
    sQ, sK, sV, sO = 12, 16, 20, 24
    sQB = 56; sTO = 72; sHS = 80; sQB2 = 84; sPAR = 47
    sQO, sKV, sW4, sOFF, sV6, sW, sTMP, sC, sROT = 28, 29, 30, 31, 32, 34, 35, 36, 38
    KS = lambda t: (t % 4) * 16384
    VS = lambda t: 65536 + (t % 4) * 16384
    QS = lambda qb: 65536 + (qb + 1) * 16384
    tiles = [('K', 0), ('Q', 0), ('Q', 1), ('Q', 2)]
    tiles += [('K', 1)]
    for t in range(2, 8): tiles += [('K', t), ('V', t - 2)]
    tiles += [('H', 0), ('H', 1)]
    QV = lambda j: 16 + j
    QA = lambda s: 20 + s
    nstamp = [0]
    def stamp():
        i = nstamp[0]; nstamp[0] += 1
        a = 60 + 4 * (i % 2); b = 60 + 4 * ((i + 1) % 2)
        t = f"s_memrealtime s[{a}:{a+1}]\ns_memtime s[{a+2}:{a+3}]"
        if i > 0: t += f"\nv_writelane_b32 v254, s{b}, {i-1}\nv_writelane_b32 v255, s{b+2}, {i-1}"
        return t

    e("s_cmp_ge_u32 s2, 256")
    e("s_cbranch_scc1 L_end")
    e(f"s_load_dwordx2 s[{sK}:{sK+1}], s[0:1], 8")
    e(f"s_load_dwordx2 s[{sQ}:{sQ+1}], s[0:1], 0")
    e(f"s_load_dwordx2 s[{sV}:{sV+1}], s[0:1], 16")
    e(f"s_load_dwordx2 s[{sO}:{sO+1}], s[0:1], 24")
    if prof:
        e("s_load_dwordx2 s[40:41], s[0:1], 40")
        e("s_memrealtime s[50:51]")
    g, n, w, t1, t2 = TMP, TMP + 1, TMP + 2, TMP + 3, TMP + 4
    e(f"v_lshrrev_b32 v{w}, 6, v0")
    e(f"v_bfe_u32 v{g}, v0, 4, 2")
    e(f"v_readfirstlane_b32 s{sW}, v{w}")
    e(f"v_and_b32 v{n}, 15, v0")
    e(f"v_xor_b32 v{t1}, v{g}, v{n}")
    e(f"v_lshlrev_b32 v{t1}, 4, v{t1}")
    e(f"v_lshl_add_u32 v{QV(0)}, v{g}, 8, v{t1}")
    e(f"v_lshlrev_b32 v{t2}, 6, v{w}")
    if ga == 0:
        e(f"v_xor_b32 v{VKD}, v{QV(0)}, v{t2}")
    else:
        e(f"v_xor_b32 v{t2}, v{t1}, v{t2}")
        e(f"v_lshl_add_u32 v{VKD}, v{g}, {8 + ga}, v{t2}")
    sG = 46
    if stag or lwin: e(f"s_bfe_u32 s{sG}, s2, {(2 << 16) | gb}")
    e("s_and_b32 s3, s2, 7")
    e("s_lshl_b32 s3, s3, 5")
    e("s_lshr_b32 s2, s2, 3")
    e("s_add_u32 s3, s2, s3")
    e(f"s_lshl_b32 s{sW4}, s{sW}, 12")
    e(f"s_lshl_b32 s{sKV}, s3, 17")
    e(f"s_add_u32 s{sKV}, s{sKV}, s{sW4}")
    tbits = [b for b in range(9) if b not in (ga, ga + 1, wa, wa + 1, 2, 3)]
    assert len(tbits) == 3
    plain = (ga, wa) == (0, 4)
    sHB = 39
    if rot:
        e(f"s_lshr_b32 s{sROT}, s3, {rsh}")
        if rmix: e(f"s_{rmix} s{sROT}, s{sROT}, s3")
    if not plain:
        e(f"s_lshl_b32 s{sHB}, s{sW}, {8 + wa}")
        e(f"s_lshl_b32 s{sTMP}, s3, 17")
        e(f"s_add_u32 s{sHB}, s{sHB}, s{sTMP}")
    for d, sz in ((sK, 33554432), (sQ, 12582912)):
        e(f"s_mov_b32 s{d+2}, {sz}")
        e(f"s_mov_b32 s{d+3}, 0x20000")
    e(f"s_mul_i32 s{sQO}, s3, 49152")
    QST = 16384 if qlin else 4096
    if qlin: e(f"s_add_u32 s{sQO}, s{sQO}, s{sW4}")
    else:
        e(f"s_mul_i32 s{sTMP}, s{sW}, 12288")
        e(f"s_add_u32 s{sQO}, s{sQO}, s{sTMP}")
    for j in range(1, 4):
        e(f"v_xor_b32 v{QV(j)}, {j << 6}, v{QV(0)}")

    def kvoff(dst, t):
        hb = sKV if plain else sHB
        if not rot:
            return [f"s_add_u32 s{dst}, s{hb}, {sum(((t >> i) & 1) << (8 + tbits[i]) for i in range(3))}"]
        runs = []
        for i, b in enumerate(tbits):
            if runs and runs[-1][1] + runs[-1][2] == b: runs[-1][2] += 1
            else: runs.append([i, b, 1])
        out = [f"s_add_u32 s{sOFF}, s{sROT}, {t}"]
        for n_, (i, b, ln) in enumerate(runs):
            out += [f"s_bfe_u32 s{sTMP}, s{sOFF}, {(ln << 16) | i}", f"s_lshl_b32 s{sTMP}, s{sTMP}, {8 + b}", f"s_add_u32 s{dst}, s{sTMP}, s{hb if n_ == 0 else dst}"]
        return out
    def piece_setup(p):
        i, j = divmod(p, 4)
        kind, t = tiles[i]
        if kind == 'H':
            return [f"s_add_u32 m0, s{sW4}, {VS(6 + t) + (j >> 1) * 2048 - t * 128 - (j & 1) * 1024}"]
        if j: return []
        base = dict(K=KS, V=VS, Q=QS)[kind](t)
        out = [f"s_add_u32 m0, s{sW4}, {base}"]
        if kind == 'Q': out.append(f"s_add_u32 s{sOFF}, s{sQO}, {t * QST}")
        elif p == 0: out += kvoff(sTO, 0)
        return out
    def piece_text(p):
        i, j = divmod(p, 4)
        kind, t = tiles[i]
        pol = ldpol(i, j, kind) if callable(ldpol) else ldpol
        if kind == 'H':
            return f"buffer_load_dwordx4 v{VHD}, s[{sV}:{sV+3}], s{(sHS + 2 * t if hsw else sTO + 6) + (j >> 1)} offen offset:{(j & 1) * 2048 + t * 128} {pol} lds"
        srd = dict(K=sK, V=sV, Q=sQ)[kind]
        vo = dict(K=VKD, V=VVD, Q=QV(j))[kind]
        so = sOFF if kind == 'Q' else sTO + t
        return f"buffer_load_dwordx4 v{vo}, s[{srd}:{srd+3}], s{so} offen offset:{j*1024} {pol} lds"
    def codetouch(lab):
        e("s_getpc_b64 s[4:5]")
        e.label(lab)
        e(f"s_lshl_b32 s6, s2, 2")
        e(f"s_add_u32 s6, s6, s{sW}")
        e(f"s_lshl_b32 s6, s6, 6")
        e("s_load_dword s7, s[4:5], s6")
        for k in range(2):
            e("s_add_u32 s6, s6, 0x2000")
            if k == 1: e(f"s_min_u32 s6, s6, L_codeend-{lab}-4")
            e(f"s_load_dword s{8+k}, s[4:5], s6")
    npieces = 4 * len(tiles)
    nextp = [0]; capv = [cap]
    def issue_now(upto):
        while nextp[0] < min(upto, npieces, capv[0]):
            p = nextp[0]; nextp[0] += 1
            if p > 0:
                for t in piece_setup(p): e(t)
            if stag and p in stag:
                thr, wv = stag[p]
                e(f"s_cmp_lt_u32 s{sG}, {thr}")
                e(f"s_cbranch_scc1 L_st{p}")
                if p == min(stag): codetouch("L_pc0")
                e(f"s_waitcnt vmcnt({wv})")
                e.label(f"L_st{p}")
            if lpw and p in lpw:
                e(f"s_cbranch_vccz L_lp{p}")
                e(f"s_waitcnt vmcnt({lpw[p]})")
                e.label(f"L_lp{p}")
            if pwin and p in pwin: e(f"s_waitcnt vmcnt({pwin[p]})")
            sc.emit(F(piece_text(p), 'dma', tag=p // 4))
    for t in piece_setup(0): e(t)
    e("s_waitcnt lgkmcnt(0)")
    if pstamps: e(stamp())
    issue_now(12)
    if pstamps: e("s_waitcnt lgkmcnt(0)"); e(stamp())
    if codepf == 1: codetouch("L_pc")
    for d, sz in ((sV, 33554432), (sO, 12582912)):
        e(f"s_mov_b32 s{d+2}, {sz}")
        e(f"s_mov_b32 s{d+3}, 0x20000")
    for tt in range(1, 8):
        for t in kvoff(sTO + tt, tt): e(t)
    for qb in range(3):
        e(f"s_add_u32 s{sQB + qb}, s{sQO}, {qb * QST}")
    if hsw:
        e(f"s_bfe_u32 s{sPAR}, s3, {(1 << 16) | (hsw - 1)}")
        e(f"s_lshl_b32 s{sPAR}, s{sPAR}, 7")
        for x in range(2):
            e(f"s_add_u32 s{sHS + x}, s{sTO + 6 + x}, s{sPAR}")
            e(f"s_sub_u32 s{sHS + 2 + x}, s{sTO + 6 + x}, s{sPAR}")
        for qb in range(3):
            e(f"s_sub_u32 s{sQB2 + qb}, s{sQB + qb}, s{sPAR}")
            e(f"s_add_u32 s{sQB + qb}, s{sQB + qb}, s{sPAR}")
    if touch:
        e(f"s_lshl_b32 s10, s{sW}, 15")
        e(f"s_lshl_b32 s11, s3, 17")
        e(f"s_add_u32 s10, s10, s11")
        e(f"s_load_dword s11, s[{sV}:{sV+1}], s10")
        if touch > 1: e(f"s_load_dword s10, s[{sO}:{sO+1}], s{sQO}")
    w1 = TMP + 5
    e(f"v_and_b32 v{w1}, 1, v{w}")
    e(f"v_lshl_add_u32 v{t2}, v{w1}, 2, v{g}")
    e(f"v_lshlrev_b32 v{t2}, 1, v{t2}")
    e(f"v_xor_b32 v{t2}, v{t2}, v{n}")
    e(f"v_lshlrev_b32 v{t2}, 4, v{t2}")
    e(f"v_lshl_add_u32 v{VVD}, v{g}, {8 + ga}, v{t2}")
    if hsw: e(f"v_xor_b32 v{VVD}, s{sPAR}, v{VVD}")
    e(f"v_lshl_add_u32 v{QA(0)}, v{n}, 8, v{t1}")
    e(f"v_lshl_add_u32 v{QA(0)}, v{w}, 12, v{QA(0)}")
    e(f"v_add_u32 v{QA(0)}, 0x10000, v{QA(0)}")
    for s in range(1, 4):
        e(f"v_xor_b32 v{QA(s)}, {s*64}, v{QA(0)}")
    r_, c_ = TMP + 6, TMP + 7
    e(f"v_lshrrev_b32 v{r_}, 2, v{n}")
    e(f"v_and_b32 v{c_}, 3, v{n}")
    e(f"v_lshl_add_u32 v{t2}, v{r_}, 4, v{c_}")
    e(f"v_lshl_add_u32 v{KA(0)}, v{t2}, 8, v{t1}")
    for s in range(1, 4):
        e(f"v_xor_b32 v{KA(s)}, {s*64}, v{KA(0)}")
    g1 = TMP + 8
    e(f"v_and_b32 v{g1}, 1, v{g}")
    e(f"v_lshl_add_u32 v{t2}, v{g}, 4, v{r_}")
    e(f"v_lshlrev_b32 v{t2}, 8, v{t2}")
    e(f"v_lshl_add_u32 v{VA(0)}, v{g1}, 2, v{r_}")
    e(f"v_lshl_add_u32 v{t2}, v{VA(0)}, 5, v{t2}")
    e(f"v_lshl_add_u32 v{VA(0)}, v{c_}, 3, v{t2}")
    e(f"v_add_u32 v{VA(0)}, 0x10000, v{VA(0)}")
    for T in range(1, 8):
        e(f"v_xor_b32 v{VA(T)}, {T*32}, v{VA(0)}")
    e(f"v_lshrrev_b32 v{t2}, 1, v{r_}")
    e(f"v_lshl_add_u32 v{t2}, v{g1}, 1, v{t2}")
    e(f"v_lshlrev_b32 v{t2}, 5, v{t2}")
    e(f"v_lshl_add_u32 v{t2}, v{c_}, 3, v{t2}")
    e(f"v_lshl_add_u32 v{t2}, v{r_}, 7, v{t2}")
    e(f"v_lshl_add_u32 v{t2}, v{g}, 12, v{t2}")
    e(f"v_add_u32 v{VB(0)}, 0x10000, v{t2}")
    for T in range(1, 4):
        e(f"v_xor_b32 v{VB(T)}, {T*32}, v{VB(0)}")
    e(f"v_lshrrev_b32 v{t1}, 1, v{g}")
    e(f"v_and_b32 v{t2}, 7, v{n}")
    e(f"v_xor_b32 v{t1}, v{t1}, v{t2}")
    e(f"v_lshlrev_b32 v{t1}, 4, v{t1}")
    e(f"v_lshl_add_u32 v{t1}, v{n}, 7, v{t1}")
    e(f"v_lshl_add_u32 v{t1}, v{g1}, 3, v{t1}")
    e(f"v_lshl_add_u32 v{OW(0)}, v{w}, 14, v{t1}")
    for i in range(1, 4):
        e(f"v_xor_b32 v{OW(i)}, {i*32}, v{OW(0)}")
    e(f"v_bfe_u32 v{t1}, v0, 3, 3")
    e(f"v_and_b32 v{t2}, 7, v0")
    e(f"v_lshlrev_b32 v{VST}, 4, v{t2}")
    e(f"v_lshl_add_u32 v{VST}, v{t1}, 8, v{VST}")
    e(f"v_xor_b32 v{t2}, v{t2}, v{t1}")
    e(f"v_lshlrev_b32 v{t2}, 4, v{t2}")
    e(f"v_lshl_add_u32 v{t2}, v{t1}, 7, v{t2}")
    e(f"v_lshl_add_u32 v{OR_}, v{w}, 14, v{t2}")
    e(f"v_lshl_add_u32 v{t2}, v{w1}, 1, v{g1}")
    e(f"v_lshlrev_b32 v{t2}, 5, v{t2}")
    e(f"v_xor_b32 v{VHD}, v{VST}, v{t2}")
    if ga:
        e(f"v_and_b32 v{VHD}, 0x4ff, v{VHD}")
        e(f"v_and_b32 v{t1}, 3, v{t1}")
        e(f"v_lshl_add_u32 v{VHD}, v{t1}, {8 + ga}, v{VHD}")
    e(f"v_mov_b32 v{t1}, 0x3f803f80")
    for i in range(4):
        e(f"v_accvgpr_write_b32 a{AONE+i}, v{t1}")
    if smf:
        e(f"v_cmp_gt_u32 vcc, 2, v{c_}")
        e(f"v_cndmask_b32 v{t1}, 0, v{t1}, vcc")
        e(f"v_and_b32 v{t2}, 1, v0")
        e(f"v_mul_u32_u24 v{t2}, 0xaaaa, v{t2}")
        e(f"v_or_b32 v{t2}, 0x4444, v{t2}")
        e(f"v_lshl_or_b32 v{IDX}, v{t2}, 16, v{t2}")
        for i in range(4):
            e(f"v_accvgpr_write_b32 a{ASP+i}, v{t1}")
    if lwin:
        e(f"s_cmp_lt_u32 s{sG}, {lthr}")
        e("s_cselect_b64 vcc, -1, 0")
    for i in range(12):
        e(f"v_mov_b32 v{L(0)+i}, 0")
    e(f"s_mov_b32 s{sC}, 0x3e0293ee")
    e(f"s_mov_b32 s{sC+1}, 0x3e0293ee")
    if pstamps: e(stamp()); e("s_waitcnt lgkmcnt(0)")
    issue_now(A)
    if pstamps: e(stamp())
    e(sc.vmwait_text(0))
    if pstamps: e("s_waitcnt lgkmcnt(0)"); e(stamp())
    e("s_barrier")
    e("s_waitcnt lgkmcnt(0)")
    for kb in range(4):
        for s in range(4):
            sc.emit(F(f"ds_read_b128 {R('a', AK(kb, s), 4)}, v{KA(s)} offset:{KS(0) + kb*1024}", 'ds'))

    slots = []; fill = []; marks = {}
    def smf_slot(t, kb, qb, pos, rev):
        c = "0" if pos == 0 else R('v', S(kb, qb), 4)
        s = 3 - pos if rev else pos
        slots.append(dict(text=f"{MF} {R('v', S(kb, qb), 4)}, {R('a', AK(kb, s), 4)}, {R('a', AQ(qb, s), 4)}, {c}", sid=(t, kb, qb, pos)))
    def l_slot(t, qb):
        if smf:
            slots.append(dict(text=f"{SMF} {R('v', L(qb), 4)}, {R('a', ASP, 4)}, {R('v', P(t, 0, qb), 8)}, v{IDX}", lid=(t, qb), cap=4))
        else:
            for ks in range(2):
                slots.append(dict(text=f"{MF} {R('v', L(qb), 4)}, {R('a', AONE, 4)}, {R('v', P(t, ks, qb), 4)}, {R('v', L(qb), 4)}", **({'lid': (t, qb)} if ks == 0 else {})))
    zat = {}
    for t in range(8):
        marks[('K', t)] = len(slots)
        order = [(kb, qb) for qb in range(3) for kb in range(4)] if t == 0 else [(kb, 2 - qb if zig and kb % 2 == 0 else qb) for kb in range(4) for qb in range(3)]
        ncut = (48 - SYNC + 2) // 4
        for c, (kb, qb) in enumerate(order):
            if t >= 2 and c == ncut:
                if t == 2: l_slot(0, 0)
                zat[('V', t - 2)] = len(slots)
                l_slot(t - 2, 1); l_slot(t - 2, 2)
            if t == 7:
                for q2 in range(3):
                    if l6at[q2] == c: l_slot(6, q2)
            for s in range(4): smf_slot(t, kb, qb, s, zig and c % 2)
        if t < 2: continue
        u = t - 2
        marks[('V', u)] = len(slots)
        ncut = (48 - SYNC + 1) // 2
        for T in range(8):
            for qi in range(3):
                qb = 2 - qi if zig and T % 2 else qi
                if u < 5 and T * 3 + qi == ncut:
                    zat[('K', t + 1)] = len(slots)
                    l_slot(u + 1, 0)
                if u == 5:
                    if T * 3 + qi in l7at: l_slot(7, l7at.index(T * 3 + qi))
                    if T * 3 + qi == (48 - SYNCH[0] + 1) // 2:
                        zat[('H', 0)] = len(slots)
                        l_slot(7, 2)
                for pos in range(2):
                    ks = 1 - pos if zig and (T * 3 + qi) % 2 else pos
                    c = "0" if (u == 0 and pos == 0) else R('v', O(qb, T), 4)
                    slots.append(dict(text=f"{MF} {R('v', O(qb, T), 4)}, {R('a', AV(u%2, ks, T), 4)}, {R('v', P(u, ks, qb), 4)}, {c}",
                                      pid=(u, T, qi, pos)))
    HORD = [[(T, qb) for qb in range(3) for T in range(4)],
            [(T, qb) for T in range(4) for qb in range(2)] + [(T, 2) for T in range(4)],
            [(T, qb) for T in range(4) for qb in range(3)]]
    hrev = {}
    for h in range(2):
        marks[('H', h)] = len(slots)
        for ci, (T, qb) in enumerate(HORD[hord[h]]):
            rev = int(zig and ci % 2)
            hrev.setdefault((h, T), rev)
            for tt in range(2):
                for ks in range(2):
                    o = R('v', O(qb, 4*h + T), 4)
                    slots.append(dict(text=f"{MF} {o}, {R('a', AH(h, T, tt ^ rev, ks ^ rev), 4)}, {R('v', P(6 + (tt ^ rev), ks ^ rev, qb), 4)}, {o}", hid=(h, qb, T, tt, ks)))
    sidx = {sl['sid']: k for k, sl in enumerate(slots) if 'sid' in sl}
    pidx = {sl['pid']: k for k, sl in enumerate(slots) if 'pid' in sl}
    lidx = {sl['lid']: k for k, sl in enumerate(slots) if 'lid' in sl}
    hidx = {sl['hid']: k for k, sl in enumerate(slots) if 'hid' in sl}
    kfirst = lambda t, kb: min(sidx[(t, kb, qb, 0)] for qb in range(3))
    klast = lambda t, kb: max(sidx[(t, kb, qb, 3)] for qb in range(3))
    lend = lambda t, qb: lidx[(t, qb)] + (0 if smf else 1)
    soft = {}
    for t in range(8):
        for kb in range(4):
            for qb in range(3):
                end = sidx[(t, kb, qb, 3)]
                dl = lidx[(t, qb)] - 2
                if t < 7: dl = min(dl, sidx[(t + 1, kb, qb, 0)] - 1)
                if t >= 2 and lag is not None:
                    dl = min(dl, marks[('K', t)] + lag[0] + max(0, lag[2] * (6 - t)) + ((kb * 3 + qb) * lag[1]) // 11)
                if t == 7: dl = min(dl, lidx[(7, qb)] - 2 - 16 * (3 - kb))
                b = S(kb, qb); p = P(t, kb // 2, qb) + (kb % 2) * 2
                er = end + 1
                ex = [F(f"v_exp_f32 v{b+r}, v{b+r}", 'exp', earliest=er, deadline=dl - 4 + r) for r in range(4)]
                cv = [F(f"v_cvt_pk_bf16_f32 v{p+x}, v{b+2*x}, v{b+2*x+1}", 'valu', earliest=er, deadline=dl, after=ex[2*x:2*x+2]) for x in range(2)]
                fill += ex + cv; soft[(t, kb, qb)] = ex + cv
                slots[lidx[(t, qb)]].setdefault('deps', []).extend(cv)
                if t < 7: slots[sidx[(t + 1, kb, qb, 0)]].setdefault('deps', []).extend(cv)
    def dum(n, w):
        if w and n: e("s_waitcnt lgkmcnt(0)")
        for x in range(n):
            d = 48 + 4 * ((x // 4) % 8)
            e(f"{MF} v[{d}:{d+3}], {R('a', AK((x // 4) % 4, x % 4), 4)}, {R('a', AK((x // 4 + 1 + x // 16) % 4, x % 4), 4)}, {'0' if x % 4 == 0 else f'v[{d}:{d+3}]'}")
    def qstage(qb):
        def pre(pend):
            i = 1 + qb
            issue_now(4 * i + A)
            if qb == warmq and stubs:
                for x in range(len(stubs)):
                    e(f"s_cmp_eq_u32 s{sW}, {x}")
                    e(f"s_cbranch_scc1 L_stub{x}")
                e.label("L_ret")
                e("s_cmp_lg_u32 s3, s3")
            if dummy: dum(dummy[qb], qb == 0)
            e(sc.vmwait_text(i))
            if prof: e(stamp())
            rd = []
            for s in range(4):
                f = F(f"ds_read_b128 {R('v', 4*s, 4)}, v{QA(s)} offset:{QS(qb) - 65536}", 'ds'); sc.emit(f); rd.append(f)
            issue_now(4 * i + A + 1)
            if qb:
                sc.drain([f for kb in range(4) for f in soft[(0, kb, qb - 1)] if not f.done])
            for s in range(4):
                sc.lgkm(rd[s])
                for j in range(4):
                    x = 4 * s + j; tt = 24 + 2 * j
                    e(f"v_lshlrev_b32 v{tt}, 16, v{x}")
                    e(f"v_and_b32 v{tt+1}, 0xffff0000, v{x}")
                for j in range(4):
                    tt = 24 + 2 * j
                    e(f"v_pk_mul_f32 v[{tt}:{tt+1}], v[{tt}:{tt+1}], s[{sC}:{sC+1}]")
                for j in range(4):
                    tt = 24 + 2 * j
                    e(f"v_cvt_pk_bf16_f32 v{tt}, v{tt}, v{tt+1}")
                for j in range(4):
                    tt = 24 + 2 * j
                    e(f"v_accvgpr_write_b32 a{AQ(qb, s)+j}, v{tt}")
                if s == 1: issue_now(4 * i + A + 2)
        return pre
    for qb in range(3):
        slots[16 * qb]['pre'] = qstage(qb)
        slots[16 * qb + 1]['pre'] = (lambda pend, qb=qb: issue_now(4 * (1 + qb) + A + 3))
    slots[48 - SYNC1 - 1]['pre'] = lambda pend: (issue_now(16 + A), dum(dummy[3], False) if dummy else None)
    p_first = min(16 + A, cap)
    zat[('K', 1)] = 48 - SYNC1; zat[('K', 2)] = 96 - SYNC
    H0, H1 = marks[('H', 0)], marks[('H', 1)]
    zat[('H', 1)] = H1 - SYNCH[1]
    syncs = [(i, zat[tiles[i]]) for i in range(4, len(tiles))]
    rdplan = []
    for i, k0 in syncs:
        kind, t = tiles[i]
        if kind == 'K':
            for j in range(8):
                kb, sh = divmod(j, 2)
                at = k0 + ([2, 4, 7, 14, 19, 26, 31, 38] if t == 1 else [2, 5, 10, 17, 22, 29, 34, 41])[j]
                assert at > klast(t - 1, kb)
                rdplan.append((i, at, [f"ds_read_b128 {R('a', AK(kb, s), 4)}, v{KA(s)} offset:{KS(t) + kb*1024}" for s in (2*sh, 2*sh+1)],
                               kfirst(t, kb) if (sh and j > 1) else kfirst(t, kb) + 2 * sh if j < 2 else None))
        elif kind == 'V':
            for j in range(16):
                T, ks = divmod(j, 2)
                rdplan.append((i, k0 + 2 + 3 * j, [f"ds_read_b64_tr_b16 {R('a', AV(t%2, ks, T) + 2*hh, 2)}, v{VA(T)} offset:{VS(t) - 65536 + (8*ks + 4*hh)*256}" for hh in range(2)],
                               pidx[(t, T, 0, 0)] if ks else None))
        else:
            if t == 0: ats = [k0 + 1 + h0step * j for j in range(16)]
            else:
                lastk = hidx[(1, 0, 3, 1, 1)] - 7
                c1 = [k for k in range(k0 + 1, lastk + 1) if (k - H0) % 2 == 1]
                c2 = [k for k in c1 if (k - H0) % 4 == 1]
                ats = sorted(c1 + c2[:max(0, 16 - len(c1))])[:16]
                assert len(ats) == 16
            for j in range(16):
                T, tp, kp = j >> 2, (j >> 1) & 1, j & 1
                tt, ks = tp ^ hrev[(t, T)], kp ^ hrev[(t, T)]
                rdplan.append((i, ats[j], [f"ds_read_b64_tr_b16 {R('a', AH(t, T, tt, ks) + 2*hh, 2)}, v{VB(T)} offset:{VS(6 + t) - 65536 + tt*2048 + (8*ks + 4*hh)*128}" for hh in range(2)],
                               hidx[(t, 0, T, tp, 0)] if kp else None))
    zz = {k0 + d for _, k0 in syncs[:-1] for d in (-1, 0, 1)}
    for n_, (i, at, txs, use) in enumerate(rdplan):
        while use is not None and use - 1 in zz: use -= 1
        assert use is None or use - at >= 6, (tiles[i], at, use)
        rdplan[n_] = (i, at, txs, use)
    rdgaps = {at for _, at, _, _ in rdplan}
    waitgaps = {u - 1 for _, _, _, u in rdplan if u is not None} | {k0 - 1 for _, k0 in syncs} | {k0 for _, k0 in syncs}
    ggaps = sorted(({k0 + 1 for _, k0 in syncs} | {k + 1 for k in rdgaps}) - rdgaps - waitgaps)
    allpos = {}
    if offs is not None:
        want = {}
        for n_ in range(len(tiles) - 5):
            d = offs[min(n_, len(offs) - 1)]
            for j in range(4): want[4 * (5 + n_) + j] = syncs[n_][1] + d - sp * (3 - j)
        p_first = min(p_first, min(p for p in want if want[p] >= syncs[0][1]))
        capv[0] = p_first
        nxt = 10**9
        for p in range(npieces - 1, p_first - 1, -1):
            c = [k for k in ggaps if k + 3 <= nxt] if p % 4 != 3 else ggaps
            nxt = allpos[p] = min(c or ggaps[:1], key=lambda k: abs(k - want[p]))
    elif pace is None:
        np_ = p_first
        for n_, (i, k0) in enumerate(syncs):
            k1 = syncs[n_ + 1][1] if n_ + 1 < len(syncs) else k0 + 48
            Ai = A if Am is None else (Am[min(n_, len(Am) - 1)] if isinstance(Am, (list, tuple)) else Am)
            ps = list(range(np_, max(np_, min(npieces, 4 * i + 4 + Ai)))); np_ += len(ps)
            for j, p in enumerate(ps):
                allpos[p] = k0 + 1 + ((j if len(ps) > 4 else p - (4 * i + Ai)) * (k1 - k0)) // max(4, len(ps))
    else:
        for p in range(p_first, npieces):
            ti, j = divmod(p, 4)
            kind, t = tiles[ti]
            kt = t if kind == 'K' else t + 2 if kind == 'V' else 7
            y = pace[kt] if isinstance(pace, (list, tuple)) else pace
            base = zat[('K', max(kt - 1, 1))]
            vs = vsp if y > 30 else 12
            allpos[p] = base + y - 12 * (3 - j) if kind == 'K' else base + y + vs * (j + 1 + (4 * (t + 1) if kind == 'H' else 0))
    last = syncs[0][1] - 2
    for p in range(p_first, npieces):
        last = allpos[p] = min(k for k in ggaps if k >= max(allpos[p], last + 3))
    def wof(p, win=win):
        if win is None: return 63
        n_ = max(j for j, (_, k0) in enumerate(syncs) if k0 <= allpos[p]); x = n_ + (allpos[p] - 1 - syncs[n_][1]) / (syncs[n_ + 1][1] - syncs[n_][1]); n0 = min(int(x), len(win) - 1); n1 = min(n0 + 1, len(win) - 1)
        v = int(win[n0] + (win[n1] - win[n0]) * (x - int(x)) + (0.125, 0.625, 0.375, 0.875)[p % 4])
        return v if v < 12 else 63
    barf = {}; dma_f = []; prev = None; np_ = p_first; ool = []
    for n_, (i, k0) in enumerate(syncs):
        k1 = syncs[n_ + 1][1] if n_ + 1 < len(syncs) else 10**9
        wz = wof(np_) if np_ < npieces and allpos[np_] == k0 + 1 else 63
        wt = F((lambda i=i, wz=wz: sc.vmwait_text(i, wz)), 'salu', earliest=k0 - 1, deadline=k0 - 1, after=[x for x in dma_f if x.tag <= i])
        br = F("s_barrier", 'salu', earliest=k0, deadline=k0, after=[wt])
        fill += [wt, br]; barf[i] = br
        if i < len(tiles) - 1: slots[k0]['only'] = True
        if prof:
            fill.append(F(stamp, 'salu', earliest=k0, deadline=k0, after=[br], tag='stamp'))
        while np_ < npieces and allpos[np_] < k1:
            p = np_; np_ += 1
            at = allpos[p]
            aft = [prev] if prev else []
            for tx in piece_setup(p):
                sf = F(tx, 'salu', earliest=max(at - 9, 48 - SYNC1 - 1), deadline=at - (1 if win is None else 2), after=aft); fill.append(sf); aft = [sf]
            if wof(p) < 63 and at != k0 + 1:
                sf = F(f"s_waitcnt vmcnt({wof(p)})", 'salu', earliest=at - 2 if at - 1 in waitgaps else at - 1, deadline=at - 1, after=aft); fill.append(sf); aft = [sf]
            if wof(p, lwin) < wof(p):
                ool.append((p, wof(p, lwin)))
                k = at - 3 if at == k0 + 1 else at - 1 if wof(p) == 63 else at - 2
                sf = F(f"s_cbranch_vccnz L_lw{p}\nL_lr{p}:", 'salu', earliest=k - 2, deadline=k, after=[prev] if prev else []); fill.append(sf); aft = aft + [sf]
            df = F(piece_text(p), 'dma', earliest=at, deadline=at, after=aft + [br], tag=p // 4)
            slots[at]['only'] = True
            fill.append(df); dma_f.append(df); prev = df
    if pad:
        for n_, cyc in enumerate(pad):
            k0 = syncs[n_][1]
            for x in range(8):
                c = cyc // 8 // 4
                if c: slots[k0 + 3 + 5 * x]['pre'] = (lambda pend, c=c: [e(f"s_nop {min(c - 16 * y, 16) - 1}") for y in range((c + 15) // 16)])
    prevrd = None
    for i, at, txs, use in rdplan:
        for tx in txs:
            f = F(tx, 'ds', earliest=at, deadline=at, after=[barf[i]] + ([prevrd] if prevrd else []))
            fill.append(f); prevrd = f
        if use is not None: slots[use]['needs'] = f
    rc = []
    for qb in range(3):
        k = lend(7, qb)
        a = [F(f"v_add_f32 v{L(qb)}, v{L(qb)}, v{L(qb)+1}", 'valu', earliest=k + 1, deadline=hidx[(0, qb, 0, 0, 0)] + 1)]; fill += a
        f = F(f"v_rcp_f32 v{RL(qb)}, v{L(qb)}", 'exp', earliest=k + 1, deadline=hidx[(0, qb, 0, 0, 0)] + 2, after=a); fill.append(f); rc.append(f)
    k = zat[('H', 1)]
    X = KA(0)
    c1 = F(f"v_max3_f32 v{X}, v{L(0)}, v{L(1)}, v{L(2)}", 'valu', earliest=lend(7, 2), deadline=k, after=rc)
    c2 = F(f"v_min3_f32 v{X+1}, v{L(0)}, v{L(1)}, v{L(2)}", 'valu', earliest=lend(7, 2), deadline=k, after=rc)
    c3 = F(f"v_cmp_nge_f32 vcc, {hex(thi)}, v{X}", 'valu', earliest=lend(7, 2), deadline=k + 1, after=[c1])
    c4 = F("s_cbranch_vccnz L_slow", 'salu', earliest=k + 1, deadline=k + 8, after=[c3, barf[len(tiles) - 1]])
    c5 = F(f"v_cmp_nle_f32 vcc, {hex(tlo)}, v{X+1}", 'valu', earliest=k, deadline=k + 10, after=[c2, c4])
    c6 = F("s_cbranch_vccnz L_slow", 'salu', earliest=k, deadline=k + 18, after=[c5])
    fill += [c1, c2, c3, c4, c5, c6]
    prevw = None; prevst = None; wr = {}
    chains = [(h, T, qb) for h in range(2) for T, qb in HORD[hord[h]]]
    ygaps = {}; lasty = 0
    for h, T, qb in chains:
        if T == 3:
            E = hidx[(h, qb, T, 1, 1)]
            y1 = max(E + 15, lasty + 4); ygaps[h * 3 + qb] = (y1, y1 + 4); lasty = y1 + 4
    yset = {y for v in ygaps.values() for y in v}
    for ci, (h, T, qb) in enumerate(chains):
        gi = h * 3 + qb
        E = hidx[(h, qb, T, 1, 1)]
        o = O(qb, 4*h + T)
        if E + 3 >= len(slots):
            mu = [F(f"v_pk_mul_f32 v[{o+2*x}:{o+2*x+1}], v[{o+2*x}:{o+2*x+1}], v[{RL(qb)}:{RL(qb)+1}] op_sel_hi:[1,0]", 'valu', earliest=E + 3, deadline=E + 3, after=[rc[qb]]) for x in range(2)]
        else:
            mu = []
            for r in range(4):
                at = E + 3 + (0 if E + 3 in yset and E + 4 in rdgaps else r // 2)
                mu.append(F(f"v_mul_f32 v{o+r}, v{RL(qb)}, v{o+r}", 'valu', earliest=at, deadline=at, after=[rc[qb]]))
        cv = [F(f"v_cvt_pk_bf16_f32 v{o+x}, v{o+2*x}, v{o+2*x+1}", 'valu', earliest=E + 5, deadline=E + 5, after=mu) for x in range(2)]
        cv[1].after.append(cv[0])
        wf = F(f"ds_write_b64 v{OW(T)}, v[{o}:{o+1}] offset:{gi * 2048}", 'dsw', earliest=E + 6, deadline=E + 6, after=cv + ([prevw] if prevw else []), cost=12)
        prevw = wf
        fill += mu + cv + [wf]; wr.setdefault(gi, []).append(wf)
        if T < 3: continue
        rfs = [F(f"ds_read_b128 {R('v', O(qb, 4*h + jj), 4)}, v{OR_} offset:{gi * 2048 + jj * 1024}", 'ds', earliest=E + 8, deadline=E + 8, after=wr[gi]) for jj in range(2)]
        fill += rfs
        if ygaps[gi][0] < len(slots):
            fill.append(F("", 'salu', earliest=ygaps[gi][0] - 1, deadline=ygaps[gi][0] - 1, needs=rfs[1]))
        for jj in range(2):
            st = F(f"buffer_store_dwordx4 {R('v', O(qb, 4*h + jj), 4)}, v{VST}, s[{sO}:{sO+3}], s{(sQB2 if hsw and h else sQB) + qb} offen offset:{jj * 2048 + h * 128} {stpol}", 'st',
                   earliest=ygaps[gi][jj], deadline=ygaps[gi][jj], after=[prevst] if prevst else [], needs=rfs[jj], tag='O', cost=12)
            if ygaps[gi][jj] < len(slots): slots[ygaps[gi][jj]]['noscal'] = True
            prevst = st
            fill.append(st)
    lastuse = {}
    for i, (kind, t) in enumerate(tiles):
        if kind == 'K': lastuse[i] = kfirst(t, 3) + 3
        elif kind == 'V': lastuse[i] = pidx[(t, 7, 0, 1)]
    slot_of = lambda kind, t: dict(K=KS, V=VS, Q=QS, H=lambda t: VS(6 + t))[kind](t)
    for f in dma_f:
        prevs = [i for i in range(f.tag) if slot_of(*tiles[i]) == slot_of(*tiles[f.tag]) and i in lastuse]
        if prevs:
            bar = max(k0 for i, k0 in syncs if k0 < f.earliest)
            assert lastuse[prevs[-1]] < bar, (tiles[f.tag], f.earliest, bar, lastuse[prevs[-1]])
    assert p_first <= 4 * 9
    sc.nopfill = nopfill
    for x, k in enumerate(stubs):
        fill.append(F(f"L_stub{x}: s_cbranch_scc1 L_ret", 'salu', earliest=k, deadline=k))
    for k, sl in enumerate(slots): sl['text'] += f"\nL_g{k}:"
    lastoff = [allpos.get(4 * i + 3, -1) - syncs[i - 5][1] for i in range(5, len(tiles))]
    sc.over = 0
    sc.run(slots, fill)
    if verbose:
        for k, u in sc.log: print(k, slots[k].get('sid') or slots[k].get('pid') or slots[k].get('lid') or slots[k].get('hid'), u)
    e.label("L_fastend")
    if prof:
        e(stamp()); e("s_waitcnt lgkmcnt(0)"); e("s_waitcnt vmcnt(0)"); e(stamp()); e("s_waitcnt lgkmcnt(0)"); e(stamp())
        e("s_memrealtime s[52:53]")
        e("s_mov_b32 s42, 0x10000000\ns_mov_b32 s43, 0x20000")
        e("s_waitcnt lgkmcnt(0)")
        e(f"v_mov_b32 v0, s50\nv_mov_b32 v1, s52\nv_mov_b32 v2, s52\nv_mov_b32 v3, s52\nv_mov_b32 v4, 0")
        e(f"s_lshl_b32 s{sTMP}, s3, 2\ns_add_u32 s{sTMP}, s{sTMP}, s{sW}\ns_lshl_b32 s44, s{sTMP}, 4")
        e(f"buffer_store_dwordx4 v[0:3], v4, s[40:43], s44 offen")
        e(f"s_lshl_b32 s44, s{sTMP}, 8\ns_add_u32 s44, s44, 0x10000")
        e("v_mbcnt_lo_u32_b32 v4, -1, 0\nv_lshlrev_b32 v4, 3, v4")
        e("s_mov_b64 exec, 0xffffffff")
        e(f"buffer_store_dwordx2 v[254:255], v4, s[40:43], s44 offen")
    if nocomp:
        drop = ('v_mfma', 'v_smfmac', 'v_exp', 'v_cvt', 'ds_', 'v_pk_mul', 'v_mul_f32', 's_cbranch_vcc', 'v_accvgpr', 'v_lshlrev_b32 v2', 'v_and_b32 v2', 'v_lshlrev_b32 v30', 'v_and_b32 v31')
        k0 = next(i for i, l in enumerate(e.lines) if l.strip() == 's_barrier')
        e.lines = e.lines[:k0] + [l if not l.strip().endswith(' lds') else "    s_nop 0\n" + l for l in e.lines[k0:] if not l.strip().startswith(drop) and not (nocomp == 2 and l.strip().startswith('buffer_store_dwordx4') and 's[24' in l)]
    if dropl:
        e.lines = [l for l in e.lines if not any(all(y in l for y in x) for x in dropl)]
    e.label("L_end")
    e("s_endpgm")
    for p, wv in ool:
        e.label(f"L_lw{p}"); e(f"s_waitcnt vmcnt({wv})"); e(f"s_branch L_lr{p}")
    e.label("L_codeend")
    slow_path(e, sK, sV, sO, sW, sKV, sQO, AQ, AONE, qst=QST)
    PAD = "" if not align else f".p2align 12\n.fill {align} * 64, 4, 0xbf800000\n" if align is not True else "@PAD@"
    src = HDR + f"""; @launch grid=(256,1,1) block=(256,1,1) lds=131072
.amdgcn_target "amdgcn-amd-amdhsa--gfx950"
.text
.globl {KNAME}
{PAD}.p2align 8
.type {KNAME},@function
{KNAME}:
{e.text()}
.section .rodata,"a"
.p2align 6
.amdhsa_kernel {KNAME}
  .amdhsa_next_free_vgpr 512
  .amdhsa_next_free_sgpr 102
  .amdhsa_accum_offset 256
  .amdhsa_group_segment_fixed_size 0
  .amdhsa_kernarg_size 48
  .amdhsa_user_sgpr_count 2
  .amdhsa_user_sgpr_kernarg_segment_ptr 1
  .amdhsa_system_sgpr_workgroup_id_x 1
.end_amdhsa_kernel
"""
    gaddr = {}
    if align is True:
        import subprocess, re
        sys.path.insert(0, 'cdna_kernels')
        from cdna_launch import with_harness_metadata
        def endoff(n):
            t = src.replace("@PAD@", f".p2align 12\n.fill {n} * 64, 4, 0xbf800000\n")
            open('_a.s', 'w').write(with_harness_metadata(t, KNAME, 6, launch_lists=True))
            subprocess.run(["clang", "-x", "assembler", "-target", "amdgcn-amd-amdhsa", "-mcpu=gfx950", "-c", "_a.s", "-o", "_a.o"], check=True)
            nm = subprocess.run(["llvm-objdump", "-t", "_a.o"], capture_output=True, text=True).stdout
            for m in re.finditer(r"([0-9a-f]+) l .*L_g(\d+)", nm): gaddr[int(m.group(2))] = int(m.group(1), 16)
            return t, int(re.search(r"([0-9a-f]+) l .*L_fastend", nm).group(1), 16) + 4
        n = ((-endoff(0)[1]) % 4096) // 256
        src, eo = endoff(n)
        assert (-eo) % 4096 < 256, hex(eo)
    import re
    src = re.sub(r"\n *L_g\d+:", "", src)
    freeg = [k for k, u in sc.log if not any(x in ('s', 'S', 'n') for x in u) and not slots[k].get('only') and not slots[k].get('noscal') and k not in sc.waited]
    return src, dict(gaddr=gaddr, freeg=freeg, nops=e.nops, over=sc.over, idle=sc.idle, slots=len(slots), lastoff=lastoff)

def gen(warm=True, **kw):
    stubs = (100, 300, 500) if warm else ()
    for it in range(6):
        src, info = gen1(stubs=stubs, **kw)
        ga = info.pop('gaddr'); fg = set(info.pop('freeg')) | set(stubs)
        if not warm: return src, info
        last = max(ga.values()) // 4096
        new = tuple(min(k for k in fg if ga[k] >= (last - 2 + x) * 4096) for x in range(3))
        info['stuboff'] = [ga[k] % 4096 for k in new]
        if new == stubs: return src, info
        stubs = new
        kw['verbose'] = False
    raise Exception("no fixpoint")

if __name__ == "__main__":
    src, info = gen(verbose=True)
    open("v5.s", "w").write(src)
    print(info)
```

```python
import gen5, sys
base = dict(lag=None, A=14, cap=26, zig=True, hsw=1, rot=False, qlin=True)
AM=[10,10,10,11,11,12,12,13,13,14]
AMb=[10,10,10,10,10,11,12,12,13,14]
V = dict(
 b0=dict(Am=AM, win=[5,3.5,3,3.5,4,4,4.5,5,5,5,5,5]),
 b1=dict(Am=AMb, win=[8,6,4,3,3,4,5,5,5,5,5,5]),
 b2=dict(Am=AMb, win=[8,6,4,2.5,3,4,5,6,6,6,6,6]),
 b3=dict(Am=AMb, win=[8,7,5,3,2.5,3.5,5,6,6,6,6,6]),
 b4=dict(Am=AMb, win=[8,5,3.5,3,3,4,5,6,6,6,6,6]),
 b5=dict(Am=AMb, win=[5,3.5,3,3,3.5,5,6,6,6,6,6,6]),
 b6=dict(Am=AM, win=[5,3.5,3,3.5,4,4.5,5,5.5,6,6,6,6]),
 b7=dict(Am=AMb, win=[4,3,3,3.5,4,5,6,6,6,6,6,6]),
)
for n,kw in V.items():
    for pf in (False, True):
        src, info = gen5.gen(prof=pf, **base, **kw)
        open(f"cdna_kernels/{n}{'p' if pf else ''}.s", "w").write(src)
    print(n, info)
```
